```python
import torch

def _softmax(x, axis=-1):
    return torch.softmax(x, dim=axis)
def _gelu(x):
    return torch.nn.functional.gelu(x, approximate="tanh")
def _silu(x):
    return torch.nn.functional.silu(x)
def _sigmoid(x):
    return torch.sigmoid(x)
def _layernorm(x, axis=-1, eps=1e-5):
    m = x.mean(dim=axis, keepdim=True)
    v = x.var(dim=axis, keepdim=True, unbiased=False)
    return (x - m) / torch.sqrt(v + eps)
def _scatter_add(tgt, idx, src, axis=0):
    return tgt.clone().index_add_(axis, idx, src)
def _segment_sum(src, seg, n):
    out = torch.zeros((n,) + src.shape[1:], dtype=src.dtype)
    return out.index_add_(0, seg, src)
def _pad(x, pw):
    flat = tuple(v for pair in reversed(pw) for v in pair)
    return torch.nn.functional.pad(x, flat)

kernel_name = 'sequential_preLN__gqa_block_cached__mixer_token_mlp__decode'

def setup_inputs():

    _w = (lambda a: (lambda t: t.to(torch.bfloat16) if t.is_floating_point() else t)(torch.as_tensor(a)))
    def _A_setup():
        B, Sq, D = 1, 1, 512
        Hq, Hkv, Sk, Dh = 32, 8, 65536, 128
        assert Hq % Hkv == 0, (Hq, Hkv)
        return {
            "x": _w((lambda *s: torch.randn(*s, dtype=torch.bfloat16) * 0.1)(B, Sq, D)),
            "k_cache": _w((lambda *s: torch.randn(*s, dtype=torch.bfloat16) * 1.6)(B, Hkv, Sk, Dh)),
            "v_cache": _w((lambda *s: torch.randn(*s, dtype=torch.bfloat16) * 1.6)(B, Hkv, Sk, Dh)),
            "wq": _w((lambda *s: torch.randn(*s, dtype=torch.bfloat16) * 1.6)(D, Hq * Dh) * (D ** -0.5)),
            "wo": _w((lambda *s: torch.randn(*s, dtype=torch.bfloat16) * 1.6)(Hq * Dh, D) * ((Hq * Dh) ** -0.5)),
        }
    _A_in = _A_setup()

    def _B_setup():
        B, S, D, F = 1, 1, 512, 1792
        return {
            "x": _w((lambda *s: torch.randn(*s, dtype=torch.bfloat16) * 0.1)(B, S, D)),
            "w1": _w((lambda *s: torch.randn(*s, dtype=torch.bfloat16) * 1.6)(S, F) * (S ** -0.5)),
            "b1": _w((lambda *s: torch.randn(*s, dtype=torch.bfloat16) * 1.6)(F) * 0.02),
            "w2": _w((lambda *s: torch.randn(*s, dtype=torch.bfloat16) * 1.6)(F, S) * (F ** -0.5)),
            "b2": _w((lambda *s: torch.randn(*s, dtype=torch.bfloat16) * 1.6)(S) * 0.02),
        }
    _B_in = _B_setup()

    return {
        "A_x": _A_in["x"],
        "A_k_cache": _A_in["k_cache"],
        "A_v_cache": _A_in["v_cache"],
        "A_wq": _A_in["wq"],
        "A_wo": _A_in["wo"],
        "B_x": _B_in["x"],
        "B_w1": _B_in["w1"],
        "B_b1": _B_in["b1"],
        "B_w2": _B_in["w2"],
        "B_b2": _B_in["b2"],
    }

def reference(A_x, A_k_cache, A_v_cache, A_wq, A_wo, B_x, B_w1, B_b1, B_w2, B_b2):
    def _A_ref(x, k_cache, v_cache, wq, wo):
        B, Sq, D = x.shape
        Hq, Dh = 32, 128
        Hkv = k_cache.shape[1]
        rep = Hq // Hkv
        q = (lambda x, *d: x.permute(*d))((x @ wq).reshape(B, Sq, Hq, Dh), 0, 2, 1, 3)
        k = (lambda x, n, axis: torch.repeat_interleave(x, n, dim=axis))(k_cache, rep, axis=1)
        v = (lambda x, n, axis: torch.repeat_interleave(x, n, dim=axis))(v_cache, rep, axis=1)
        scores = torch.einsum("bhqd,bhkd->bhqk", q, k) * (Dh ** -0.5)
        p = _softmax(scores, axis=-1)
        o = torch.einsum("bhqk,bhkd->bhqd", p, v)
        return (lambda x, *d: x.permute(*d))(o, 0, 2, 1, 3).reshape(B, Sq, Hq * Dh) @ wo

    def _B_ref(x, w1, b1, w2, b2):
        B, S, D = x.shape
        h = _layernorm(x, axis=-1)
        u = torch.einsum("bsd,sf->bdf", h, w1) + b1
        u = _gelu(u)
        y = torch.einsum("bdf,fs->bds", u, w2) + b2
        return (lambda x, *d: x.permute(*d))(y, 0, 2, 1)

    x = A_x
    h = x + _A_ref(_layernorm(x, axis=-1), A_k_cache, A_v_cache, A_wq, A_wo)
    h2 = h + _B_ref(_layernorm(h, axis=-1), B_w1, B_b1, B_w2, B_b2)
    return h2
```

```python
import re
TRANS = ("v_exp_f32", "v_log_f32", "v_rcp_f32", "v_rsq_f32", "v_sqrt_f32", "v_sin_f32", "v_cos_f32")
def regs_of(tok):
    tok = tok.strip()
    tok = re.sub(r"^-", "", tok)
    m = re.match(r"^abs\((.*)\)$", tok) or re.match(r"^\|(.*)\|$", tok)
    if m: tok = m.group(1)
    m = re.match(r"^([vsa])(\d+)$", tok)
    if m: return [(m.group(1), int(m.group(2)))]
    m = re.match(r"^([vsa])\[(\d+):(\d+)\]$", tok)
    if m: return [(m.group(1), i) for i in range(int(m.group(2)), int(m.group(3)) + 1)]
    if tok == "vcc": return [("s", 106), ("s", 107)]
    if tok == "vcc_lo": return [("s", 106)]
    if tok == "vcc_hi": return [("s", 107)]
    if tok == "exec": return [("s", 126), ("s", 127)]
    if tok == "m0": return [("s", 124)]
    return []
def split_ops(s):
    out = []; depth = 0; cur = ""
    for ch in s:
        if ch in "[(": depth += 1
        if ch in "])": depth -= 1
        if ch == "," and depth == 0: out.append(cur.strip()); cur = ""
        else: cur += ch
    if cur.strip(): out.append(cur.strip())
    return out

class Asm:
    def __init__(self):
        self.L = []
        self.t = 0
        self.vw = {}
        self.sw = {}
        self.mc = {}
        self.st = {}
        self.execw = -100
        self.m0w = -100
        self.maxv = 0; self.maxs = 0; self.maxa = -1
    def raw(self, s): self.L.append(s)
    def comment(self, s): self.L.append("  ; " + s)
    def label(self, s): self.L.append(s + ":")
    def nop(self, n):
        while n > 0:
            k = min(n, 16); self.L.append(f"  s_nop {k-1}"); self.t += k; n -= k
    def fence(self):
        need = 0
        for r, (t, c) in self.vw.items():
            d = {"valu": 2, "trans": 2, "mfma4": 8, "mfma8": 12}[c]
            need = max(need, d - (self.t - t - 1))
        for r, t in self.sw.items(): need = max(need, 5 - (self.t - t - 1))
        for r, (t, p) in self.mc.items(): need = max(need, (3 if p == 4 else 7) - (self.t - t - 1))
        for r, t in self.st.items(): need = max(need, 2 - (self.t - t - 1))
        if need > 0: self.nop(need)
    def __call__(self, s):
        s = s.strip()
        m = re.match(r"^(\S+)\s*(.*)$", s)
        op, rest = m.group(1), m.group(2)
        if op == "s_nop":
            self.L.append("  " + s); self.t += int(rest) + 1; return
        ops = split_ops(rest)
        mods = ""
        if ops:
            last = ops[-1]
            parts = last.split(None, 1)
            if len(parts) == 2 and not last.startswith("hwreg") and not op.startswith("s_waitcnt"):
                ops[-1] = parts[0]; mods = parts[1]
        is_mfma = op.startswith("v_mfma")
        is_valu = op.startswith("v_") and not is_mfma
        is_vmem = op.startswith(("buffer_", "global_", "flat_"))
        is_ds = op.startswith("ds_")
        is_dpp = op.endswith("_dpp") or "quad_perm" in mods or "row_" in mods
        is_perml = op.startswith("v_permlane")
        is_rdl = op.startswith(("v_readlane", "v_readfirstlane"))
        W = []; R = []; C = []; STD = []
        rl = [regs_of(o) for o in ops]
        if is_mfma:
            W = rl[0]; R = rl[1] + rl[2]; C = rl[3]
        elif is_perml:
            W = rl[0] + rl[1]; R = rl[0] + rl[1]
        elif is_valu:
            W = rl[0]; R = sum(rl[1:], [])
            if op.startswith(("v_fmac", "v_dot2c", "v_writelane")): R += rl[0]
            if op.startswith(("v_add_co", "v_sub_co", "v_addc_co", "v_subb_co", "v_div_scale", "v_mad_u64")):
                W = rl[0] + rl[1]; R = sum(rl[2:], [])
            if op.startswith("v_cndmask") and len(ops) == 3: R += regs_of("vcc")
            if op.startswith("v_cmpx"): W += regs_of("exec")
            if is_dpp and not op.startswith("v_mov"): pass
        elif is_vmem:
            if "load" in op and " lds" not in (" " + mods) and "lds" not in op:
                W = rl[0]; R = sum(rl[1:], [])
            elif "atomic" in op:
                if "sc0" in mods and op.startswith("global"): W = rl[0]; R = sum(rl[1:], [])
                elif "sc0" in mods: W = rl[0]; R = sum(rl, [])
                else: R = sum(rl, [])
            else:
                R = sum(rl, [])
                if "store" in op and op.endswith(("x4", "x3")):
                    STD = rl[0] if op.startswith("buffer") else rl[1]
        elif is_ds:
            if op.startswith(("ds_read", "ds_bpermute", "ds_permute", "ds_swizzle")) or "_rtn" in op:
                W = rl[0]; R = sum(rl[1:], [])
            else: R = sum(rl, [])
        else:
            if op.startswith(("s_cmp", "s_cbranch", "s_branch", "s_waitcnt", "s_barrier", "s_endpgm", "s_sleep", "s_setprio", "s_bitcmp")):
                R = sum(rl, [])
            else:
                W = rl[0] if rl else []; R = sum(rl[1:], [])
        for (k, i) in W + R + C:
            if k == "v": self.maxv = max(self.maxv, i)
            if k == "a": self.maxa = max(self.maxa, i)
            if k == "s" and i < 102: self.maxs = max(self.maxs, i)
        need = 0
        def dist(t): return self.t - t - 1
        def req(n, t):
            nonlocal need
            need = max(need, n - dist(t))
        vec = lambda regs: [r for r in regs if r[0] in "va"]
        for r in vec(R):
            if r in self.vw:
                t, c = self.vw[r]
                if c.startswith("mfma"):
                    req(8 if c == "mfma4" else 12, t)
                else:
                    if is_mfma: req(2, t)
                    if is_dpp or is_perml: req(2, t)
                    if is_rdl: req(1, t)
                    if c == "trans" and (is_valu and not op.startswith(TRANS) or is_mfma or is_vmem or is_ds): req(1, t)
        for r in vec(C):
            if r in self.vw:
                t, c = self.vw[r]
                if c.startswith("mfma"):
                    if not (rl[0] == rl[3]): req(6 if c == "mfma4" else 10, t)
                else: req(2, t)
        for r in vec(W):
            if r in self.vw:
                t, c = self.vw[r]
                if c.startswith("mfma") and not (is_mfma and rl[0] == rl[3]):
                    req(8 if c == "mfma4" else 12, t)
            if r in self.mc and is_valu:
                t, p = self.mc[r]; req(3 if p == 4 else 7, t)
            if r in self.st:
                req(2 if is_valu else 1, self.st[r])
        for r in [x for x in R if x[0] == "s"]:
            if r in self.sw:
                t = self.sw[r]
                if is_valu or is_mfma: req(4 if (is_rdl or op.startswith("v_writelane")) and r in sum(rl[2:], []) else 2, t)
                if is_vmem: req(5, t)
                if op.startswith("v_div_fmas"): req(4, t)
        if op.startswith("v_div_fmas") and ("s", 106) in self.sw: req(4, self.sw[("s", 106)])
        if (is_vmem and ("lds" in op or " lds" in " " + mods)): req(1, self.m0w)
        if need > 0: self.nop(need)
        self.L.append("  " + s)
        now = self.t
        self.t += 1
        if is_mfma:
            cls = "mfma8" if "32x32" in op else "mfma4"
            for r in W: self.vw[r] = (now, cls)
            for r in C: self.mc[r] = (now, 8 if cls == "mfma8" else 4)
        elif is_valu:
            cls = "trans" if op.startswith(TRANS) else "valu"
            for r in W:
                if r[0] in "va": self.vw[r] = (now, cls)
                else: self.sw[r] = now
        else:
            for r in W:
                if r[0] in "va": self.vw.pop(r, None)
                else:
                    self.sw.pop(r, None)
                    if r == ("s", 124): self.m0w = now
        for r in STD: self.st[r] = now
    def text(self): return "\n".join(self.L) + "\n"

def v(i, n=1): return f"v{i}" if n == 1 else f"v[{i}:{i+n-1}]"
def s(i, n=1): return f"s{i}" if n == 1 else f"s[{i}:{i+n-1}]"
DPPM = "row_mask:0xf bank_mask:0xf"
def f32hex(x):
    import struct
    return "0x%08x" % struct.unpack("<I", struct.pack("<f", x))[0]
```

```python
import sys
from asmlib import *
KN = "sequential_preLN__gqa_block_cached__mixer_token_mlp__decode"
LOG2E = 1.4426950408889634
SCALE = 128 ** -0.5
WS_QP = 0x0; WS_OP = 0x40000; WS_ML = 0xC0000; WS_YP = 0xD0000
WS_STAMP = 0x10000000

def allreduce(a, op, r, tmp, lanes=64, start=1):
    if start <= 1: a(f"{op}_dpp {v(r)}, {v(r)}, {v(r)} quad_perm:[1,0,3,2] {DPPM}")
    if start <= 2: a(f"{op}_dpp {v(r)}, {v(r)}, {v(r)} quad_perm:[2,3,0,1] {DPPM}")
    if start <= 2:
        a(f"{op}_dpp {v(r)}, {v(r)}, {v(r)} row_half_mirror {DPPM}")
        a(f"{op}_dpp {v(r)}, {v(r)}, {v(r)} row_mirror {DPPM}")
    else:
        a(f"{op}_dpp {v(r)}, {v(r)}, {v(r)} row_ror:4 {DPPM}")
        a(f"{op}_dpp {v(r)}, {v(r)}, {v(r)} row_ror:8 {DPPM}")
    if lanes >= 32:
        a(f"v_mov_b32 {v(tmp)}, {v(r)}"); a(f"v_permlane16_swap_b32 {v(r)}, {v(tmp)}"); a(f"{op} {v(r)}, {v(r)}, {v(tmp)}")
    if lanes >= 64:
        a(f"v_mov_b32 {v(tmp)}, {v(r)}"); a(f"v_permlane32_swap_b32 {v(r)}, {v(tmp)}"); a(f"{op} {v(r)}, {v(r)}, {v(tmp)}")

def rne1(a, d, src, t):
    a(f"v_cvt_pk_bf16_f32 {v(t)}, {v(src)}, {v(src)}"); a(f"v_lshlrev_b32 {v(d)}, 16, {v(t)}")
def rne2(a, d0, d1, s0, s1, t):
    a(f"v_cvt_pk_bf16_f32 {v(t)}, {v(s0)}, {v(s1)}")
    a(f"v_lshlrev_b32 {v(d0)}, 16, {v(t)}"); a(f"v_and_b32 {v(d1)}, 0xffff0000, {v(t)}")
def unpack(a, d0, d1, src):
    a(f"v_lshlrev_b32 {v(d0)}, 16, {v(src)}"); a(f"v_and_b32 {v(d1)}, 0xffff0000, {v(src)}")

def ln_stats(a, X, mb, sq, rc, t0, t1, t2):
    a(f"v_add_f32 {v(t0)}, {v(X[0])}, {v(X[1])}"); a(f"v_add_f32 {v(t1)}, {v(X[2])}, {v(X[3])}")
    a(f"v_add_f32 {v(t2)}, {v(X[4])}, {v(X[5])}"); a(f"v_add_f32 {v(t0)}, {v(t0)}, {v(t1)}")
    a(f"v_add_f32 {v(t1)}, {v(X[6])}, {v(X[7])}"); a(f"v_add_f32 {v(t2)}, {v(t2)}, {v(t1)}")
    a(f"v_add_f32 {v(t0)}, {v(t0)}, {v(t2)}")
    allreduce(a, "v_add_f32", t0, t1)
    a(f"v_mul_f32 {v(t0)}, {f32hex(1/512)}, {v(t0)}")
    rne1(a, mb, t0, t1)
    a(f"v_sub_f32 {v(t1)}, {v(X[0])}, {v(t0)}"); a(f"v_mul_f32 {v(t2)}, {v(t1)}, {v(t1)}")
    for i in range(1, 8):
        a(f"v_sub_f32 {v(t1)}, {v(X[i])}, {v(t0)}"); a(f"v_fmac_f32 {v(t2)}, {v(t1)}, {v(t1)}")
    allreduce(a, "v_add_f32", t2, t1)
    a(f"v_mul_f32 {v(t2)}, {f32hex(1/512)}, {v(t2)}")
    rne1(a, t2, t2, t1)
    a(f"v_add_f32 {v(t2)}, {f32hex(1e-5)}, {v(t2)}")
    rne1(a, t2, t2, t1)
    a(f"v_sqrt_f32 {v(t2)}, {v(t2)}")
    rne1(a, sq, t2, t1)
    a(f"v_rcp_f32 {v(rc)}, {v(sq)}")

def ln_pair(a, xi, xk, mb, sq, rc, dpk, ta, tb, tc, td):
    a(f"v_sub_f32 {v(ta)}, {v(xi)}, {v(mb)}"); a(f"v_sub_f32 {v(tb)}, {v(xk)}, {v(mb)}")
    rne2(a, ta, tb, ta, tb, tc)
    a(f"v_mul_f32 {v(tc)}, {v(ta)}, {v(rc)}"); a(f"v_mul_f32 {v(td)}, {v(tb)}, {v(rc)}")
    a(f"v_fma_f32 {v(ta)}, -{v(tc)}, {v(sq)}, {v(ta)}"); a(f"v_fma_f32 {v(tb)}, -{v(td)}, {v(sq)}, {v(tb)}")
    a(f"v_fmac_f32 {v(tc)}, {v(ta)}, {v(rc)}"); a(f"v_fmac_f32 {v(td)}, {v(tb)}, {v(rc)}")
    a(f"v_cvt_pk_bf16_f32 {v(dpk)}, {v(tc)}, {v(td)}")

def kernel_head(a, name):
    a.raw(f".globl {name}"); a.raw(".p2align 8"); a.raw(f".type {name},@function"); a.label(name)
def kd(name, nv, ns, acc=None):
    acc = acc or min(256, (nv + 3) // 4 * 4)
    return "\n".join([f".p2align 6", f".amdhsa_kernel {name}", f"  .amdhsa_next_free_vgpr {nv}", f"  .amdhsa_next_free_sgpr {ns}",
        f"  .amdhsa_accum_offset {acc}", "  .amdhsa_group_segment_fixed_size 0", "  .amdhsa_kernarg_size 104",
        "  .amdhsa_user_sgpr_count 2", "  .amdhsa_user_sgpr_kernarg_segment_ptr 1", "  .amdhsa_system_sgpr_workgroup_id_x 1",
        "  .amdhsa_float_denorm_mode_32 3", ".end_amdhsa_kernel"]) + "\n"

def transp_mfma(a, V, T, Aop, ACC, sel_lo, sel_hi, first=False, between=None):
    for cc in range(4):
        for p in range(4):
            a(f"v_perm_b32 {v(T+4*(2*cc)+p)}, {v(V+4*(2*p+1)+cc)}, {v(V+4*(2*p)+cc)}, {s(sel_lo)}")
            a(f"v_perm_b32 {v(T+4*(2*cc+1)+p)}, {v(V+4*(2*p+1)+cc)}, {v(V+4*(2*p)+cc)}, {s(sel_hi)}")
    if between: between()
    for e in range(8):
        c = "0" if first else v(ACC+4*e, 4)
        a(f"v_mfma_f32_16x16x32_bf16 {v(ACC+4*e,4)}, {v(Aop,4)}, {v(T+4*e,4)}, {c}")

def q_produce(a, R, pol):
    W, T, ACC, M = R["W"], R["T"], R["ACC"], R["M"]
    X = [M + i for i in range(8)]
    xr = M + 8
    vo = M + 12; mb = M + 13; sq = M + 14; rc = M + 15
    t0, t1, t2, t3 = T, T + 1, T + 2, T + 3
    a(f"v_lshlrev_b32 {v(vo)}, 4, v0")
    a(f"global_load_dwordx4 {v(xr,4)}, {v(vo)}, s[36:37]")
    a(f"v_lshrrev_b32 {v(t0)}, 4, v0"); a(f"v_lshlrev_b32 {v(t0)}, 13, {v(t0)}")
    a(f"v_and_b32 {v(t1)}, 15, v0"); a(f"v_lshlrev_b32 {v(t1)}, 4, {v(t1)}"); a(f"v_add_u32 {v(vo)}, {v(t0)}, {v(t1)}")
    a("s_lshr_b32 s29, s21, 2")
    a("s_and_b32 s30, s21, 3")
    a("s_lshl_b32 s31, s20, 2"); a("s_add_u32 s31, s31, s30")
    a("s_lshl_b32 s32, s29, 19"); a("s_lshl_b32 s33, s31, 8"); a("s_add_u32 s32, s32, s33")
    for jj in range(16):
        a(f"buffer_load_dwordx4 {v(W+4*jj,4)}, {v(vo)}, s[16:19], s32 offen")
        if jj < 15: a("s_add_u32 s32, s32, 32768")
    a("s_waitcnt vmcnt(16)")
    for i in range(4): unpack(a, X[2*i], X[2*i+1], xr + i)
    ln_stats(a, X, mb, sq, rc, t0, t1, t2)
    a(f"v_lshrrev_b32 {v(t0)}, 2, v0"); a(f"v_lshlrev_b32 {v(t0)}, 6, {v(t0)}")
    a(f"v_and_b32 {v(t1)}, 3, v0"); a(f"v_lshl_add_u32 {v(vo)}, {v(t1)}, 2, {v(t0)}")
    for e in range(4):
        ln_pair(a, X[e], X[e+4], mb, sq, rc, xr + e, t0, t1, t2, t3)
        a(f"ds_write_b32 {v(vo)}, {v(xr+e)} offset:{R['LDS_XN'] + 16*e}")
    a(f"v_lshrrev_b32 {v(t0)}, 4, v0"); a(f"v_lshlrev_b32 {v(t0)}, 4, {v(t0)}")
    a("s_lshl_b32 s33, s29, 7"); a(f"v_add_u32 {v(t0)}, s33, {v(t0)}")
    a("s_waitcnt lgkmcnt(0)")
    a(f"ds_read_b128 {v(X[0],4)}, {v(t0)} offset:{R['LDS_XN']}")
    a(f"ds_read_b128 {v(X[4],4)}, {v(t0)} offset:{R['LDS_XN']+64}")
    a("s_waitcnt vmcnt(8) lgkmcnt(0)")
    transp_mfma(a, W, T, X[0], ACC, 25, 26, first=True)
    a("s_waitcnt vmcnt(0)")
    transp_mfma(a, W + 32, T, X[4], ACC, 25, 26)
    a(f"v_lshlrev_b32 {v(vo)}, 5, v0")
    a("s_lshl_b32 s32, s29, 14"); a("s_lshl_b32 s33, s31, 9"); a("s_add_u32 s32, s32, s33")
    a(f"v_add_u32 {v(vo)}, s32, {v(vo)}")
    for e in range(8): a(f"v_mov_b32 {v(T+e)}, {v(ACC+4*e)}")
    a("s_mov_b64 exec, 0xffff")
    a(f"global_store_dwordx4 {v(vo)}, {v(T,4)}, s[46:47] offset:{WS_QP} {pol}")
    a(f"global_store_dwordx4 {v(vo)}, {v(T+4,4)}, s[46:47] offset:{WS_QP+16} {pol}")
    a("s_mov_b64 exec, -1")

def common_k1_setup(a):
    a("s_load_dwordx8 s[36:43], s[0:1], 0")
    a("s_load_dwordx2 s[44:45], s[0:1], 88")
    a("s_load_dwordx2 s[46:47], s[0:1], 96")
    a("v_lshrrev_b32 v1, 6, v0")
    a("v_readfirstlane_b32 s3, v1")
    a("v_and_b32 v0, 63, v0")
    a("s_and_b32 s20, s2, 7"); a("s_lshr_b32 s21, s2, 3")
    a("s_mov_b32 s25, 0x05040100"); a("s_mov_b32 s26, 0x07060302")
    a(f"s_mov_b32 s27, {f32hex(LOG2E)}"); a(f"s_mov_b32 s28, {f32hex(SCALE)}")

def gen_k0(a, name):
    kernel_head(a, name)
    a("s_cmp_ge_u32 s2, 256"); a(f"s_cbranch_scc1 {name}_end")
    common_k1_setup(a)
    a("s_waitcnt lgkmcnt(0)")
    a("s_mov_b32 s16, s42"); a("s_mov_b32 s17, s43"); a("s_mov_b32 s18, 0x400000"); a("s_mov_b32 s19, 0x20000")
    R = dict(W=64, T=32, ACC=128, M=8, LDS_XN=0)
    q_produce(a, R, "")
    a.label(f"{name}_end"); a("s_endpgm")

def gen_k1(a, name, fused_q, kvpol="nt", stamps=False):
    vK0, vK1, vV0, vV1 = 1, 2, 3, 4
    m, negm, l, lbias, mnew, al, tm = 5, 6, 7, 8, 9, 10, 11
    S = 12; P = 20; C4 = 24; Q = 28; O = 44; T = 76
    KA, VA, KB, VB = 112, 144, 176, 208
    M = 240
    LDS_XN = 0; LDS_Q = 1024; LDS_OM = 2048; LDS_ML = 2048 + 16384
    kernel_head(a, name)
    a("s_cmp_ge_u32 s2, 256"); a(f"s_cbranch_scc1 {name}_end")
    if stamps: a("s_memrealtime s[50:51]")
    common_k1_setup(a)
    a("s_lshl_b32 s29, s3, 13")
    a(f"v_lshlrev_b32 {v(vV0)}, 4, v0"); a(f"v_add_u32 {v(vV0)}, s29, {v(vV0)}"); a(f"v_add_u32 {v(vV1)}, 0x1000, {v(vV0)}")
    a(f"v_and_b32 {v(vK0)}, 3, v0"); a(f"v_lshlrev_b32 {v(vK0)}, 10, {v(vK0)}")
    a(f"v_bfe_u32 {v(tm)}, v0, 2, 2"); a(f"v_lshl_add_u32 {v(vK0)}, {v(tm)}, 8, {v(vK0)}")
    a(f"v_lshrrev_b32 {v(tm)}, 4, v0"); a(f"v_lshl_add_u32 {v(vK0)}, {v(tm)}, 4, {v(vK0)}")
    a(f"v_add_u32 {v(vK0)}, s29, {v(vK0)}"); a(f"v_add_u32 {v(vK1)}, 0x1000, {v(vK0)}")
    a("s_lshl_b32 s29, s20, 24"); a("s_lshl_b32 s30, s21, 19"); a("s_add_u32 s29, s29, s30")
    a("s_waitcnt lgkmcnt(0)")
    a("s_add_u32 s8, s38, s29"); a("s_addc_u32 s9, s39, 0"); a("s_mov_b32 s10, 0x80000"); a("s_mov_b32 s11, 0x20000")
    a("s_add_u32 s12, s40, s29"); a("s_addc_u32 s13, s41, 0"); a("s_mov_b32 s14, 0x80000"); a("s_mov_b32 s15, 0x20000")
    a("s_mov_b32 s16, s42"); a("s_mov_b32 s17, s43"); a("s_mov_b32 s18, 0x400000"); a("s_mov_b32 s19, 0x20000")
    def loadK(K):
        for j in range(8):
            a(f"buffer_load_dwordx4 {v(K+4*j,4)}, {v(vK0 if j < 4 else vK1)}, s[8:11], 0 offen offset:{(j&3)*64} {kvpol}")
        a(f"v_add_u32 {v(vK0)}, 0x10000, {v(vK0)}"); a(f"v_add_u32 {v(vK1)}, 0x10000, {v(vK1)}")
    def loadV(V):
        for j in range(8):
            a(f"buffer_load_dwordx4 {v(V+4*j,4)}, {v(vV0 if j < 4 else vV1)}, s[12:15], 0 offen offset:{(j&3)*1024} {kvpol}")
        a(f"v_add_u32 {v(vV0)}, 0x10000, {v(vV0)}"); a(f"v_add_u32 {v(vV1)}, 0x10000, {v(vV1)}")
    a("s_cmp_lg_u32 s3, 0"); a(f"s_cbranch_scc1 {name}_pre")
    pol = "sc1" if fused_q else ""
    if fused_q:
        R = dict(W=KA, T=T, ACC=O, M=M, LDS_XN=LDS_XN)
        q_produce(a, R, pol)
        a("s_waitcnt vmcnt(0)")
        a("s_lshl_b32 s29, s20, 2")
        a(f"v_mov_b32 {v(M)}, s29"); a(f"v_mov_b32 {v(M+1)}, 1")
        a("s_mov_b64 exec, 1")
        a(f"global_atomic_add {v(M)}, {v(M+1)}, s[44:45]")
        a.label(f"{name}_poll")
        a(f"global_load_dword {v(M+2)}, {v(M)}, s[44:45] sc1")
        a("s_waitcnt vmcnt(0)")
        a(f"v_readfirstlane_b32 s29, {v(M+2)}")
        a("s_cmp_lt_u32 s29, 32")
        a(f"s_cbranch_scc1 {name}_poll")
        a("s_mov_b64 exec, -1")
    a("s_lshl_b32 s29, s20, 11")
    a(f"v_lshl_add_u32 {v(M)}, v0, 4, s29")
    for p in range(8):
        for hf in range(2):
            a(f"global_load_dwordx4 {v(KA+8*p+4*hf,4)}, {v(M)}, s[46:47] offset:{hf*1024} {pol}")
        a(f"v_add_u32 {v(M)}, 0x4000, {v(M)}")
    for p in range(1, 8):
        a(f"s_waitcnt vmcnt({14-2*p})")
        for i in range(8): a(f"v_add_f32 {v(KA+i)}, {v(KA+i)}, {v(KA+8*p+i)}")
    for i in range(4): a(f"v_cvt_pk_bf16_f32 {v(M+4+i)}, {v(KA+2*i)}, {v(KA+2*i+1)}")
    a(f"v_lshlrev_b32 {v(M)}, 3, v0")
    a(f"ds_write_b64 {v(M)}, {v(M+4,2)} offset:{LDS_Q}")
    a(f"ds_write_b64 {v(M)}, {v(M+6,2)} offset:{LDS_Q+512}")
    a.fence()
    a.label(f"{name}_pre")
    loadK(KA); loadV(VA); loadK(KB); loadV(VB)
    a(f"v_mov_b32 {v(m)}, 0xff800000"); a(f"v_mov_b32 {v(l)}, 0"); a(f"v_mov_b32 {v(negm)}, 0")
    for i in range(32): a(f"v_mov_b32 {v(O+i)}, 0")
    a(f"v_bfe_u32 {v(tm)}, v0, 2, 2"); a(f"v_lshrrev_b32 {v(al)}, 4, v0")
    a(f"v_cmp_eq_u32 vcc, {v(tm)}, {v(al)}")
    a(f"v_mov_b32 {v(tm)}, 0xff800000")
    a(f"v_cndmask_b32 {v(lbias)}, {v(tm)}, 0, vcc")
    a(f"v_and_b32 {v(tm)}, 3, v0"); a(f"v_lshlrev_b32 {v(tm)}, 8, {v(tm)}"); a(f"v_lshl_add_u32 {v(tm)}, {v(al)}, 4, {v(tm)}")
    a("s_waitcnt lgkmcnt(0)")
    a("s_barrier")
    for t in range(4): a(f"ds_read_b128 {v(Q+4*t,4)}, {v(tm)} offset:{LDS_Q+64*t}")
    a("s_mov_b32 s23, 0")
    a("s_waitcnt lgkmcnt(0)")
    if stamps: a("s_memrealtime s[52:53]")
    a.fence()
    a.label(f"{name}_loop")
    def tile(K, V, tag):
        a("s_waitcnt vmcnt(24)")
        for t in range(4):
            for g in range(2):
                c = "0" if t == 0 else v(S+4*g, 4)
                a(f"v_mfma_f32_16x16x32_bf16 {v(S+4*g,4)}, {v(K+16*g+4*t,4)}, {v(Q+4*t,4)}, {c}")
        loadK(K)
        for i in range(4): a(f"v_cvt_pk_bf16_f32 {v(C4+i)}, {v(S+2*i)}, {v(S+2*i+1)}")
        for i in range(4): unpack(a, S+2*i, S+2*i+1, C4+i)
        for i in range(8): a(f"v_mul_f32 {v(S+i)}, s28, {v(S+i)}")
        for i in range(4): a(f"v_cvt_pk_bf16_f32 {v(C4+i)}, {v(S+2*i)}, {v(S+2*i+1)}")
        for i in range(4): unpack(a, S+2*i, S+2*i+1, C4+i)
        a(f"v_max3_f32 {v(mnew)}, {v(m)}, {v(S)}, {v(S+1)}")
        for i in range(1, 4): a(f"v_max3_f32 {v(mnew)}, {v(mnew)}, {v(S+2*i)}, {v(S+2*i+1)}")
        a(f"v_cmp_gt_f32 vcc, {v(mnew)}, {v(m)}")
        a(f"s_cbranch_vccz {name}_skip{tag}")
        a(f"v_sub_f32 {v(al)}, {v(m)}, {v(mnew)}"); a(f"v_mul_f32 {v(al)}, s27, {v(al)}"); a(f"v_exp_f32 {v(al)}, {v(al)}")
        a(f"v_mov_b32 {v(m)}, {v(mnew)}")
        a(f"v_fma_f32 {v(negm)}, {v(mnew)}, -s27, {v(lbias)}")
        a(f"v_mul_f32 {v(l)}, {v(l)}, {v(al)}")
        for e in range(8):
            for r in range(4):
                a(f"v_mul_f32_dpp {v(O+4*e+r)}, {v(al)}, {v(O+4*e+r)} quad_perm:[{r},{r},{r},{r}] {DPPM}")
        a.label(f"{name}_skip{tag}")
        for i in range(8): a(f"v_fma_f32 {v(S+i)}, {v(S+i)}, s27, {v(negm)}")
        for i in range(8): a(f"v_exp_f32 {v(S+i)}, {v(S+i)}")
        for i in range(4): a(f"v_cvt_pk_bf16_f32 {v(P+i)}, {v(S+2*i)}, {v(S+2*i+1)}")
        for i in range(4): a(f"v_add_f32 {v(C4+i)}, {v(S+2*i)}, {v(S+2*i+1)}")
        a(f"v_add_f32 {v(C4)}, {v(C4)}, {v(C4+1)}"); a(f"v_add_f32 {v(C4+2)}, {v(C4+2)}, {v(C4+3)}")
        a(f"v_add_f32 {v(C4)}, {v(C4)}, {v(C4+2)}"); a(f"v_add_f32 {v(l)}, {v(l)}, {v(C4)}")
        a("s_waitcnt vmcnt(24)")
        transp_mfma(a, V, T, P, O, 25, 26, between=lambda: loadV(V))
    tile(KA, VA, "A")
    tile(KB, VB, "B")
    a("s_add_u32 s23, s23, 1"); a("s_cmp_lt_u32 s23, 4")
    a(f"s_cbranch_scc1 {name}_loop")
    a.fence()
    if stamps: a("s_memrealtime s[54:55]")
    Mw = mnew
    a(f"v_mov_b32 {v(Mw)}, {v(m)}")
    a(f"v_mov_b32 {v(tm)}, {v(Mw)}"); a(f"v_permlane16_swap_b32 {v(Mw)}, {v(tm)}"); a(f"v_max_f32 {v(Mw)}, {v(Mw)}, {v(tm)}")
    a(f"v_mov_b32 {v(tm)}, {v(Mw)}"); a(f"v_permlane32_swap_b32 {v(Mw)}, {v(tm)}"); a(f"v_max_f32 {v(Mw)}, {v(Mw)}, {v(tm)}")
    a(f"v_sub_f32 {v(al)}, {v(m)}, {v(Mw)}"); a(f"v_mul_f32 {v(al)}, s27, {v(al)}"); a(f"v_exp_f32 {v(al)}, {v(al)}")
    a(f"v_mul_f32 {v(l)}, {v(l)}, {v(al)}")
    for e in range(8):
        for r in range(4):
            a(f"v_mul_f32_dpp {v(O+4*e+r)}, {v(al)}, {v(O+4*e+r)} quad_perm:[{r},{r},{r},{r}] {DPPM}")
    allreduce(a, "v_add_f32", l, tm, start=4)
    for e in range(8):
        a(f"v_permlane32_swap_b32 {v(O+4*e)}, {v(O+4*e+2)}"); a(f"v_permlane32_swap_b32 {v(O+4*e+1)}, {v(O+4*e+3)}")
    for e in range(8):
        a(f"v_add_f32 {v(O+4*e)}, {v(O+4*e)}, {v(O+4*e+2)}"); a(f"v_add_f32 {v(O+4*e+1)}, {v(O+4*e+1)}, {v(O+4*e+3)}")
    for e in range(8): a(f"v_permlane16_swap_b32 {v(O+4*e)}, {v(O+4*e+1)}")
    for e in range(8): a(f"v_add_f32 {v(T+e)}, {v(O+4*e)}, {v(O+4*e+1)}")
    a("s_lshl_b32 s29, s3, 11")
    a(f"v_lshl_add_u32 {v(tm)}, v0, 5, s29")
    a(f"ds_write_b128 {v(tm)}, {v(T,4)} offset:{LDS_OM}"); a(f"ds_write_b128 {v(tm)}, {v(T+4,4)} offset:{LDS_OM+16}")
    a("s_lshl_b32 s29, s3, 3")
    a(f"v_lshl_add_u32 {v(tm)}, v0, 6, s29")
    a(f"v_mov_b32 {v(S)}, {v(Mw)}"); a(f"v_mov_b32 {v(S+1)}, {v(l)}")
    a("s_mov_b64 exec, 0xf")
    a(f"ds_write_b64 {v(tm)}, {v(S,2)} offset:{LDS_ML}")
    a("s_mov_b64 exec, -1")
    a("s_waitcnt lgkmcnt(0)")
    a("s_barrier")
    a("s_lshr_b32 s29, s3, 1")
    a("s_lshl_b32 s30, s29, 6"); a(f"v_mov_b32 {v(tm)}, s30")
    for i in range(4): a(f"ds_read_b128 {v(T+4*i,4)}, {v(tm)} offset:{LDS_ML+16*i}")
    a("s_lshl_b32 s30, s3, 8")
    a(f"v_lshl_add_u32 {v(al)}, v0, 2, s30")
    for w in range(0, 8, 2):
        a(f"ds_read2st64_b32 {v(T+16+w,2)}, {v(al)} offset0:{LDS_OM//256 + 8*w} offset1:{LDS_OM//256 + 8*(w+1)}")
    a("s_waitcnt lgkmcnt(4)")
    Mx = mnew
    a(f"v_max3_f32 {v(Mx)}, {v(T)}, {v(T+2)}, {v(T+4)}"); a(f"v_max3_f32 {v(Mx)}, {v(Mx)}, {v(T+6)}, {v(T+8)}")
    a(f"v_max3_f32 {v(Mx)}, {v(Mx)}, {v(T+10)}, {v(T+12)}"); a(f"v_max_f32 {v(Mx)}, {v(Mx)}, {v(T+14)}")
    for w in range(8):
        a(f"v_sub_f32 {v(T+2*w)}, {v(T+2*w)}, {v(Mx)}")
    for w in range(8): a(f"v_mul_f32 {v(T+2*w)}, s27, {v(T+2*w)}")
    for w in range(8): a(f"v_exp_f32 {v(T+2*w)}, {v(T+2*w)}")
    a(f"v_mul_f32 {v(S+1)}, {v(T)}, {v(T+1)}")
    for w in range(1, 8): a(f"v_fmac_f32 {v(S+1)}, {v(T+2*w)}, {v(T+2*w+1)}")
    a("s_waitcnt lgkmcnt(0)")
    a(f"v_mul_f32 {v(S+2)}, {v(T)}, {v(T+16)}")
    for w in range(1, 8): a(f"v_fmac_f32 {v(S+2)}, {v(T+2*w)}, {v(T+16+w)}")
    a(f"v_mov_b32 {v(S)}, {v(Mx)}")
    a("s_lshl_b32 s30, s20, 2"); a("s_add_u32 s30, s30, s29")
    a("s_lshl_b32 s30, s30, 5"); a("s_add_u32 s30, s30, s21")
    a("s_lshl_b32 s31, s30, 9"); a("s_and_b32 s32, s3, 1"); a("s_lshl_b32 s32, s32, 8"); a("s_add_u32 s31, s31, s32")
    a(f"s_add_u32 s31, s31, {WS_OP}")
    a(f"v_lshl_add_u32 {v(tm)}, v0, 2, s31")
    a(f"global_store_dword {v(tm)}, {v(S+2)}, s[46:47]")
    a("s_lshl_b32 s31, s30, 3"); a(f"s_add_u32 s31, s31, {WS_ML}")
    a(f"v_mov_b32 {v(tm)}, s31")
    a("s_mov_b64 exec, 1")
    a("s_bitcmp1_b32 s3, 0"); a(f"s_cbranch_scc1 {name}_noml")
    a(f"global_store_dwordx2 {v(tm)}, {v(S,2)}, s[46:47]")
    a.label(f"{name}_noml")
    if stamps:
        a("s_waitcnt vmcnt(0)")
        a("s_memrealtime s[56:57]")
        a("s_waitcnt lgkmcnt(0)")
        a("s_lshl_b32 s29, s2, 3"); a("s_add_u32 s29, s29, s3"); a("s_lshl_b32 s29, s29, 5"); a(f"s_add_u32 s29, s29, {WS_STAMP}")
        a(f"v_mov_b32 {v(tm)}, s29")
        for i in range(8): a(f"v_mov_b32 {v(T+i)}, s{50+i}")
        a(f"global_store_dwordx4 {v(tm)}, {v(T,4)}, s[46:47]"); a(f"global_store_dwordx4 {v(tm)}, {v(T+4,4)}, s[46:47] offset:16")
    a.label(f"{name}_end"); a("s_endpgm")
    return LDS_ML + 256

def gen_k3(a, name):
    kernel_head(a, name)
    a("s_cmp_ge_u32 s2, 256"); a(f"s_cbranch_scc1 {name}_end")
    a("s_load_dwordx2 s[4:5], s[0:1], 32"); a("s_load_dwordx2 s[6:7], s[0:1], 96")
    a("v_lshrrev_b32 v1, 6, v0"); a("v_readfirstlane_b32 s3, v1")
    a("v_and_b32 v2, 63, v0")
    a("s_and_b32 s8, s2, 7"); a("s_bfe_u32 s9, s2, 0x20003"); a("s_lshr_b32 s10, s2, 5")
    a("s_lshl_b32 s8, s8, 2"); a("s_add_u32 s8, s8, s9")
    a(f"s_mov_b32 s27, {f32hex(LOG2E)}")
    WO = 16; OO = 32; ML = 48; t0, t1, t2, t3 = 4, 5, 6, 7; Cj = 52; ACC = 56; orow = 64; U = 72
    a("s_lshl_b32 s11, s8, 17"); a("s_lshl_b32 s12, s3, 13"); a("s_add_u32 s11, s11, s12"); a("s_lshl_b32 s12, s10, 7"); a("s_add_u32 s11, s11, s12")
    a(f"v_lshrrev_b32 {v(t0)}, 3, v2"); a(f"v_lshlrev_b32 {v(t0)}, 10, {v(t0)}"); a(f"v_and_b32 {v(t1)}, 7, v2")
    a(f"v_lshl_add_u32 {v(t0)}, {v(t1)}, 4, {v(t0)}"); a(f"v_add_u32 {v(t0)}, s11, {v(t0)}")
    a(f"v_and_b32 {v(t1)}, 31, v0"); a("s_lshl_b32 s11, s8, 8"); a(f"s_add_u32 s11, s11, {WS_ML}")
    a(f"v_lshl_add_u32 {v(t2)}, {v(t1)}, 3, s11")
    a("s_lshl_b32 s11, s8, 14"); a(f"s_add_u32 s11, s11, {WS_OP}")
    a(f"v_lshrrev_b32 {v(t3)}, 5, v0"); a(f"v_lshlrev_b32 {v(t3)}, 11, {v(t3)}"); a(f"v_lshl_add_u32 {v(t3)}, {v(t1)}, 4, {v(t3)}"); a(f"v_add_u32 {v(t3)}, s11, {v(t3)}")
    a("s_waitcnt lgkmcnt(0)")
    a(f"global_load_dwordx2 {v(ML,2)}, {v(t2)}, s[6:7]")
    for i in range(4): a(f"global_load_dwordx4 {v(OO+4*i,4)}, {v(t3)}, s[6:7] offset:{512*i}")
    for it in range(4):
        a(f"global_load_dwordx4 {v(WO+4*it,4)}, {v(t0)}, s[4:5]")
        if it < 3: a(f"v_add_u32 {v(t0)}, 0x8000, {v(t0)}")
    a("s_waitcnt vmcnt(8)")
    a(f"v_mov_b32 {v(t0)}, {v(ML)}")
    allreduce(a, "v_max_f32", t0, t2, lanes=32)
    a(f"v_sub_f32 {v(t0)}, {v(ML)}, {v(t0)}"); a(f"v_mul_f32 {v(t0)}, s27, {v(t0)}"); a(f"v_exp_f32 {v(t0)}, {v(t0)}")
    a(f"v_mul_f32 {v(t3)}, {v(t0)}, {v(ML+1)}")
    allreduce(a, "v_add_f32", t3, t2, lanes=32)
    a(f"v_rcp_f32 {v(t2)}, {v(t3)}")
    a(f"v_mul_f32 {v(t0)}, {v(t0)}, {v(t2)}")
    a("s_lshl_b32 s11, s3, 7"); a(f"v_lshl_add_u32 {v(t2)}, {v(t1)}, 2, s11")
    a(f"ds_write_b32 {v(t2)}, {v(t0)}")
    a(f"v_lshrrev_b32 {v(t3)}, 5, v0"); a(f"v_lshl_add_u32 {v(t3)}, {v(t3)}, 4, s11")
    a("s_waitcnt lgkmcnt(0)")
    a(f"ds_read_b128 {v(Cj,4)}, {v(t3)}")
    a("s_waitcnt vmcnt(4) lgkmcnt(0)")
    for d in range(4): a(f"v_mul_f32 {v(ACC+d)}, {v(Cj)}, {v(OO+d)}")
    for i in range(1, 4):
        for d in range(4): a(f"v_fmac_f32 {v(ACC+d)}, {v(Cj+i)}, {v(OO+4*i+d)}")
    a(f"v_permlane32_swap_b32 {v(ACC)}, {v(ACC+1)}"); a(f"v_permlane32_swap_b32 {v(ACC+2)}, {v(ACC+3)}")
    a(f"v_add_f32 {v(ACC)}, {v(ACC)}, {v(ACC+1)}"); a(f"v_add_f32 {v(ACC+1)}, {v(ACC+2)}, {v(ACC+3)}")
    a("s_lshl_b32 s11, s3, 9")
    a(f"v_lshrrev_b32 {v(t3)}, 5, v2"); a(f"v_lshl_add_u32 {v(t3)}, {v(t1)}, 2, {v(t3)}"); a(f"v_lshl_add_u32 {v(t3)}, {v(t3)}, 2, s11")
    a(f"ds_write2_b32 {v(t3)}, {v(ACC)}, {v(ACC+1)} offset0:128 offset1:130")
    a("s_lshl_b32 s11, s3, 5"); a(f"v_lshrrev_b32 {v(t3)}, 3, v2"); a(f"v_lshl_add_u32 {v(t3)}, {v(t3)}, 2, s11")
    a("s_waitcnt lgkmcnt(0)"); a("s_barrier")
    for it in range(4):
        a(f"ds_read2st64_b32 {v(U+4*it,2)}, {v(t3)} offset0:2 offset1:4")
        a(f"ds_read2st64_b32 {v(U+4*it+2,2)}, {v(t3)} offset0:6 offset1:8")
        if it < 3: a(f"v_add_u32 {v(t3)}, 128, {v(t3)}")
    a("s_waitcnt lgkmcnt(0)")
    for it in range(4):
        a(f"v_add_f32 {v(U+4*it)}, {v(U+4*it)}, {v(U+4*it+1)}"); a(f"v_add_f32 {v(U+4*it+2)}, {v(U+4*it+2)}, {v(U+4*it+3)}")
        a(f"v_add_f32 {v(orow+it)}, {v(U+4*it)}, {v(U+4*it+2)}")
    rne2(a, orow, orow+1, orow, orow+1, t0); rne2(a, orow+2, orow+3, orow+2, orow+3, t0)
    a("s_waitcnt vmcnt(0)")
    for it in range(4):
        for c in range(4): unpack(a, U+2*c, U+2*c+1, WO+4*it+c)
        for c in range(8):
            a(f"v_mul_f32 {v(ACC+c)}, {v(orow+it)}, {v(U+c)}" if it == 0 else f"v_fmac_f32 {v(ACC+c)}, {v(orow+it)}, {v(U+c)}")
    for k in range(4): a(f"v_permlane32_swap_b32 {v(ACC+2*k)}, {v(ACC+2*k+1)}")
    for k in range(4): a(f"v_add_f32 {v(U+k)}, {v(ACC+2*k)}, {v(ACC+2*k+1)}")
    for k in range(2): a(f"v_permlane16_swap_b32 {v(U+2*k)}, {v(U+2*k+1)}")
    for k in range(2): a(f"v_add_f32 {v(ACC+k)}, {v(U+2*k)}, {v(U+2*k+1)}")
    for k in range(2): a(f"v_add_f32_dpp {v(ACC+k)}, {v(ACC+k)}, {v(ACC+k)} row_ror:8 {DPPM}")
    a(f"v_and_b32 {v(t0)}, 8, v2"); a(f"v_cmp_ne_u32 vcc, 0, {v(t0)}")
    a(f"v_and_b32 {v(t1)}, 7, v2"); a(f"v_lshlrev_b32 {v(t1)}, 3, {v(t1)}"); a(f"v_lshrrev_b32 {v(t0)}, 1, {v(t0)}"); a(f"v_add_u32 {v(t1)}, {v(t1)}, {v(t0)}")
    a(f"v_bfe_u32 {v(t0)}, v2, 4, 1"); a(f"v_lshl_add_u32 {v(t1)}, {v(t0)}, 1, {v(t1)}")
    a(f"v_lshrrev_b32 {v(t0)}, 5, v2"); a(f"v_add_u32 {v(t1)}, {v(t1)}, {v(t0)}")
    a(f"v_cndmask_b32 {v(ACC)}, {v(ACC)}, {v(ACC+1)}, vcc")
    a("s_lshl_b32 s11, s3, 8"); a(f"v_lshl_add_u32 {v(t1)}, {v(t1)}, 2, s11")
    a(f"ds_write_b32 {v(t1)}, {v(ACC)} offset:2560")
    a("s_waitcnt lgkmcnt(0)"); a("s_barrier")
    a("s_cmp_lg_u32 s3, 0"); a(f"s_cbranch_scc1 {name}_end")
    a(f"v_lshlrev_b32 {v(t1)}, 2, v2")
    a(f"ds_read2st64_b32 {v(U,2)}, {v(t1)} offset0:10 offset1:11"); a(f"ds_read2st64_b32 {v(U+2,2)}, {v(t1)} offset0:12 offset1:13")
    a("s_lshl_b32 s11, s8, 11"); a("s_lshl_b32 s12, s10, 8"); a("s_add_u32 s11, s11, s12"); a(f"s_add_u32 s11, s11, {WS_YP}")
    a(f"v_add_u32 {v(t1)}, s11, {v(t1)}")
    a("s_waitcnt lgkmcnt(0)")
    a(f"v_add_f32 {v(U)}, {v(U)}, {v(U+1)}"); a(f"v_add_f32 {v(U+2)}, {v(U+2)}, {v(U+3)}"); a(f"v_add_f32 {v(U)}, {v(U)}, {v(U+2)}")
    a(f"global_store_dword {v(t1)}, {v(U)}, s[6:7]")
    a.label(f"{name}_end"); a("s_endpgm")
    return 2560 + 1024

def gen_k4(a, name):
    kernel_head(a, name)
    a("s_cmp_ge_u32 s2, 256"); a(f"s_cbranch_scc1 {name}_end")
    a("s_load_dwordx2 s[4:5], s[0:1], 0")
    a("s_load_dwordx8 s[8:15], s[0:1], 48")
    a("s_load_dwordx2 s[16:17], s[0:1], 80")
    a("s_load_dwordx2 s[6:7], s[0:1], 96")
    a("v_lshrrev_b32 v1, 6, v0"); a("v_readfirstlane_b32 s3, v1"); a("v_and_b32 v2, 63, v0")
    Y = 16; W1, B1, W2 = 8, 9, 10; XR = 11; t0, t1, t2, t3 = 4, 5, 6, 7; X = [32+i for i in range(8)]; mb, sq, rc = 40, 41, 42; PK = 44; U = 48
    LP = 0; LH = 32768; LB = LH + 2048; LR = LB + 64
    a("s_lshl_b32 s18, s3, 12"); a(f"s_add_u32 s18, s18, {WS_YP}")
    a(f"v_lshl_add_u32 {v(t0)}, v2, 4, s18")
    a(f"v_lshlrev_b32 {v(t1)}, 2, v0")
    a(f"v_min_u32 {v(t1)}, {895*4}, {v(t1)}")
    a(f"v_and_b32 {v(t2)}, 511, v0"); a(f"v_lshlrev_b32 {v(t2)}, 1, {v(t2)}")
    a("s_waitcnt lgkmcnt(0)")
    for i in range(4): a(f"global_load_dwordx4 {v(Y+4*i,4)}, {v(t0)}, s[6:7] offset:{1024*i}")
    a(f"global_load_ushort {v(XR)}, {v(t2)}, s[4:5]")
    a(f"global_load_dword {v(W1)}, {v(t1)}, s[8:9]"); a(f"global_load_dword {v(B1)}, {v(t1)}, s[10:11]"); a(f"global_load_dword {v(W2)}, {v(t1)}, s[12:13]")
    a("s_load_dword s20, s[14:15], 0")
    a("s_waitcnt vmcnt(4)")
    for i in range(8): a(f"v_add_f32 {v(Y+i)}, {v(Y+i)}, {v(Y+8+i)}")
    a("s_lshl_b32 s18, s3, 11"); a(f"v_lshl_add_u32 {v(t0)}, v2, 4, s18")
    a(f"ds_write_b128 {v(t0)}, {v(Y,4)} offset:{LP}"); a(f"ds_write_b128 {v(t0)}, {v(Y+4,4)} offset:{LP+1024}")
    a("s_waitcnt lgkmcnt(0)"); a("s_barrier")
    a("s_cmp_ge_u32 s3, 8"); a(f"s_cbranch_scc1 {name}_b2")
    a(f"v_lshlrev_b32 {v(t0)}, 2, v0")
    for i in range(8): a(f"ds_read2st64_b32 {v(Y+2*i,2)}, {v(t0)} offset0:{16*i} offset1:{16*i+8}")
    a("s_waitcnt lgkmcnt(0)")
    for i in range(8): a(f"v_add_f32 {v(Y+2*i)}, {v(Y+2*i)}, {v(Y+2*i+1)}")
    for i in range(4): a(f"v_add_f32 {v(Y+4*i)}, {v(Y+4*i)}, {v(Y+4*i+2)}")
    a(f"v_add_f32 {v(Y)}, {v(Y)}, {v(Y+4)}"); a(f"v_add_f32 {v(Y+8)}, {v(Y+8)}, {v(Y+12)}"); a(f"v_add_f32 {v(Y)}, {v(Y)}, {v(Y+8)}")
    rne1(a, Y, Y, t1)
    a("s_waitcnt vmcnt(3)")
    a(f"v_lshlrev_b32 {v(XR)}, 16, {v(XR)}"); a(f"v_add_f32 {v(Y)}, {v(Y)}, {v(XR)}")
    rne1(a, Y, Y, t1)
    a(f"ds_write_b32 {v(t0)}, {v(Y)} offset:{LH}")
    a("s_waitcnt lgkmcnt(0)")
    a.label(f"{name}_b2")
    a("s_barrier")
    a("s_cmp_lg_u32 s3, 0"); a(f"s_cbranch_scc1 {name}_b3")
    a(f"v_lshlrev_b32 {v(t0)}, 5, v2")
    a(f"ds_read_b128 {v(X[0],4)}, {v(t0)} offset:{LH}"); a(f"ds_read_b128 {v(X[4],4)}, {v(t0)} offset:{LH+16}")
    a("s_waitcnt lgkmcnt(0)")
    ln_stats(a, X, mb, sq, rc, t0, t1, t2)
    for i in range(4):
        ln_pair(a, X[2*i], X[2*i+1], mb, sq, rc, PK, t0, t1, t2, t3)
        unpack(a, X[2*i], X[2*i+1], PK)
    ln_stats(a, X, mb, sq, rc, t0, t1, t2)
    for i in range(4):
        ln_pair(a, X[2*i], X[2*i+1], mb, sq, rc, PK+i, t0, t1, t2, t3)
    a(f"v_lshlrev_b32 {v(t0)}, 4, v2")
    a(f"ds_write_b128 {v(t0)}, {v(PK,4)} offset:{LP}")
    a("s_waitcnt lgkmcnt(0)")
    a.label(f"{name}_b3")
    a("s_barrier")
    a("s_lshl_b32 s18, s2, 2"); a(f"v_mov_b32 {v(t0)}, s18")
    a(f"ds_read_b32 {v(t1)}, {v(t0)} offset:{LP}")
    a("s_waitcnt vmcnt(0) lgkmcnt(0)")
    H0, H1 = 12, 13
    unpack(a, H0, H1, t1)
    w1a, w1b, b1a, b1b, w2a, w2b = 14, 15, 16, 17, 18, 19
    unpack(a, w1a, w1b, W1); unpack(a, b1a, b1b, B1); unpack(a, w2a, w2b, W2)
    a(f"v_cmp_gt_u32 vcc, 896, v0")
    a(f"v_cndmask_b32 {v(w2a)}, 0, {v(w2a)}, vcc"); a(f"v_cndmask_b32 {v(w2b)}, 0, {v(w2b)}, vcc")
    c0 = -2.0 * LOG2E * 0.7978845608028654; c1 = c0 * 0.044715
    a(f"s_mov_b32 s21, {f32hex(c0)}"); a(f"s_mov_b32 s22, {f32hex(c1)}")
    u = [U+i for i in range(4)]; w = [U+4+i for i in range(4)]; z = [U+8+i for i in range(4)]
    a(f"v_mul_f32 {v(u[0])}, {v(H0)}, {v(w1a)}"); a(f"v_mul_f32 {v(u[1])}, {v(H0)}, {v(w1b)}")
    a(f"v_mul_f32 {v(u[2])}, {v(H1)}, {v(w1a)}"); a(f"v_mul_f32 {v(u[3])}, {v(H1)}, {v(w1b)}")
    rne2(a, u[0], u[1], u[0], u[1], t0); rne2(a, u[2], u[3], u[2], u[3], t1)
    a(f"v_add_f32 {v(u[0])}, {v(u[0])}, {v(b1a)}"); a(f"v_add_f32 {v(u[1])}, {v(u[1])}, {v(b1b)}")
    a(f"v_add_f32 {v(u[2])}, {v(u[2])}, {v(b1a)}"); a(f"v_add_f32 {v(u[3])}, {v(u[3])}, {v(b1b)}")
    rne2(a, u[0], u[1], u[0], u[1], t0); rne2(a, u[2], u[3], u[2], u[3], t1)
    a(f"v_mov_b32 {v(t2)}, s21")
    for i in range(4): a(f"v_mul_f32 {v(w[i])}, {v(u[i])}, {v(u[i])}")
    for i in range(4): a(f"v_fma_f32 {v(w[i])}, {v(w[i])}, s22, {v(t2)}")
    for i in range(4): a(f"v_mul_f32 {v(w[i])}, {v(w[i])}, {v(u[i])}")
    for i in range(4): a(f"v_exp_f32 {v(w[i])}, {v(w[i])}")
    for i in range(4): a(f"v_add_f32 {v(w[i])}, 1.0, {v(w[i])}")
    for i in range(4): a(f"v_rcp_f32 {v(w[i])}, {v(w[i])}")
    for i in range(4): a(f"v_mul_f32 {v(u[i])}, {v(u[i])}, {v(w[i])}")
    rne2(a, u[0], u[1], u[0], u[1], t0); rne2(a, u[2], u[3], u[2], u[3], t1)
    a(f"v_mul_f32 {v(z[0])}, {v(u[0])}, {v(w2a)}"); a(f"v_mul_f32 {v(z[1])}, {v(u[2])}, {v(w2a)}")
    a(f"v_fmac_f32 {v(z[0])}, {v(u[1])}, {v(w2b)}"); a(f"v_fmac_f32 {v(z[1])}, {v(u[3])}, {v(w2b)}")
    a(f"v_permlane32_swap_b32 {v(z[0])}, {v(z[1])}"); a(f"v_add_f32 {v(z[0])}, {v(z[0])}, {v(z[1])}")
    allreduce(a, "v_add_f32", z[0], t0, lanes=32)
    a("s_lshl_b32 s18, s3, 2"); a(f"v_lshl_add_u32 {v(t0)}, v2, 1, s18")
    a("s_mov_b32 s24, 1"); a("s_mov_b32 s25, 1"); a("s_mov_b64 exec, s[24:25]")
    a(f"ds_write_b32 {v(t0)}, {v(z[0])} offset:{LR}")
    a("s_mov_b64 exec, -1")
    a("s_waitcnt lgkmcnt(0)"); a("s_barrier")
    a("s_cmp_lg_u32 s3, 0"); a(f"s_cbranch_scc1 {name}_end")
    a(f"v_lshrrev_b32 {v(t0)}, 5, v2"); a(f"v_and_b32 {v(t1)}, 15, v2"); a(f"v_lshlrev_b32 {v(t1)}, 2, {v(t1)}"); a(f"v_lshl_add_u32 {v(t1)}, {v(t0)}, 6, {v(t1)}")
    a(f"ds_read_b32 {v(z[0])}, {v(t1)} offset:{LR}")
    a("s_lshl_b32 s18, s2, 3"); a(f"v_lshl_add_u32 {v(t2)}, {v(t0)}, 2, s18")
    a(f"ds_read_b32 {v(z[1])}, {v(t2)} offset:{LH}")
    a("s_lshl_b32 s20, s20, 16")
    a("s_waitcnt lgkmcnt(0)")
    allreduce(a, "v_add_f32", z[0], t3, lanes=16)
    rne1(a, z[0], z[0], t3)
    a(f"v_add_f32 {v(z[0])}, s20, {v(z[0])}")
    rne1(a, z[0], z[0], t3)
    a(f"v_add_f32 {v(z[0])}, {v(z[0])}, {v(z[1])}")
    a(f"v_cvt_pk_bf16_f32 {v(z[0])}, {v(z[0])}, {v(z[0])}")
    a(f"v_lshrrev_b32 {v(t2)}, 1, {v(t2)}")
    a("s_mov_b64 exec, s[24:25]")
    a(f"global_store_short {v(t2)}, {v(z[0])}, s[16:17]")
    a.label(f"{name}_end"); a("s_endpgm")
    return LR + 128

def build(fn, fused_q=False, kvpol="nt", stamps=False):
    parts = []; kds = []; launches = []
    def mk(name, fnc, grid, block, **kw):
        a = Asm(); lds = fnc(a, name, **kw) or 1024
        parts.append(a.text()); kds.append(kd(name, a.maxv + 1, max(a.maxs + 1, 16)))
        launches.append(f"; @launch kernel={name} grid=({grid},1,1) block=({block},1,1) lds={lds}")
    if not fused_q: mk("qproj_kernel", gen_k0, 256, 64)
    mk("attn_kernel", gen_k1, 256, 512, fused_q=fused_q, kvpol=kvpol, stamps=stamps)
    mk("oproj_kernel", gen_k3, 256, 256)
    mk("mixer_kernel", gen_k4, 256, 1024)
    out = "\n".join(launches) + '\n.amdgcn_target "amdgcn-amd-amdhsa--gfx950"\n.text\n' + "".join(parts)
    out += '.section .rodata,"a"\n' + "".join(kds)
    open(fn, "w").write(out)

if __name__ == "__main__":
    build("v1_sep.s", fused_q=False)
    build("v1_fq.s", fused_q=True)
    build("v1_sep_st.s", fused_q=False, stamps=True)
    build("v1_fq_st.s", fused_q=True, stamps=True)
```

```python
import sys
from asmlib import *
KN = "sequential_preLN__gqa_block_cached__mixer_token_mlp__decode"
LOG2E = 1.4426950408889634
SCALE = 128 ** -0.5
WS_QP = 0x0; WS_OP = 0x40000; WS_ML = 0xC0000; WS_YP = 0xD0000
WS_STAMP = 0x10000000

def allreduce(a, op, r, tmp, lanes=64, start=1):
    if start <= 1: a(f"{op}_dpp {v(r)}, {v(r)}, {v(r)} quad_perm:[1,0,3,2] {DPPM}")
    if start <= 2: a(f"{op}_dpp {v(r)}, {v(r)}, {v(r)} quad_perm:[2,3,0,1] {DPPM}")
    if start <= 2:
        a(f"{op}_dpp {v(r)}, {v(r)}, {v(r)} row_half_mirror {DPPM}")
        a(f"{op}_dpp {v(r)}, {v(r)}, {v(r)} row_mirror {DPPM}")
    else:
        a(f"{op}_dpp {v(r)}, {v(r)}, {v(r)} row_ror:4 {DPPM}")
        a(f"{op}_dpp {v(r)}, {v(r)}, {v(r)} row_ror:8 {DPPM}")
    if lanes >= 32:
        a(f"v_mov_b32 {v(tmp)}, {v(r)}"); a(f"v_permlane16_swap_b32 {v(r)}, {v(tmp)}"); a(f"{op} {v(r)}, {v(r)}, {v(tmp)}")
    if lanes >= 64:
        a(f"v_mov_b32 {v(tmp)}, {v(r)}"); a(f"v_permlane32_swap_b32 {v(r)}, {v(tmp)}"); a(f"{op} {v(r)}, {v(r)}, {v(tmp)}")

def rne1(a, d, src, t):
    a(f"v_cvt_pk_bf16_f32 {v(t)}, {v(src)}, {v(src)}"); a(f"v_lshlrev_b32 {v(d)}, 16, {v(t)}")
def rne2(a, d0, d1, s0, s1, t):
    a(f"v_cvt_pk_bf16_f32 {v(t)}, {v(s0)}, {v(s1)}")
    a(f"v_lshlrev_b32 {v(d0)}, 16, {v(t)}"); a(f"v_and_b32 {v(d1)}, 0xffff0000, {v(t)}")
def unpack(a, d0, d1, src):
    a(f"v_lshlrev_b32 {v(d0)}, 16, {v(src)}"); a(f"v_and_b32 {v(d1)}, 0xffff0000, {v(src)}")

def ln_stats(a, X, mb, sq, rc, t0, t1, t2):
    a(f"v_add_f32 {v(t0)}, {v(X[0])}, {v(X[1])}"); a(f"v_add_f32 {v(t1)}, {v(X[2])}, {v(X[3])}")
    a(f"v_add_f32 {v(t2)}, {v(X[4])}, {v(X[5])}"); a(f"v_add_f32 {v(t0)}, {v(t0)}, {v(t1)}")
    a(f"v_add_f32 {v(t1)}, {v(X[6])}, {v(X[7])}"); a(f"v_add_f32 {v(t2)}, {v(t2)}, {v(t1)}")
    a(f"v_add_f32 {v(t0)}, {v(t0)}, {v(t2)}")
    allreduce(a, "v_add_f32", t0, t1)
    a(f"v_mul_f32 {v(t0)}, {f32hex(1/512)}, {v(t0)}")
    rne1(a, mb, t0, t1)
    a(f"v_sub_f32 {v(t1)}, {v(X[0])}, {v(t0)}"); a(f"v_mul_f32 {v(t2)}, {v(t1)}, {v(t1)}")
    for i in range(1, 8):
        a(f"v_sub_f32 {v(t1)}, {v(X[i])}, {v(t0)}"); a(f"v_fmac_f32 {v(t2)}, {v(t1)}, {v(t1)}")
    allreduce(a, "v_add_f32", t2, t1)
    a(f"v_mul_f32 {v(t2)}, {f32hex(1/512)}, {v(t2)}")
    rne1(a, t2, t2, t1)
    a(f"v_add_f32 {v(t2)}, {f32hex(1e-5)}, {v(t2)}")
    rne1(a, t2, t2, t1)
    a(f"v_sqrt_f32 {v(t2)}, {v(t2)}")
    rne1(a, sq, t2, t1)
    a(f"v_rcp_f32 {v(rc)}, {v(sq)}")

def ln_pair(a, xi, xk, mb, sq, rc, dpk, ta, tb, tc, td):
    a(f"v_sub_f32 {v(ta)}, {v(xi)}, {v(mb)}"); a(f"v_sub_f32 {v(tb)}, {v(xk)}, {v(mb)}")
    rne2(a, ta, tb, ta, tb, tc)
    a(f"v_mul_f32 {v(tc)}, {v(ta)}, {v(rc)}"); a(f"v_mul_f32 {v(td)}, {v(tb)}, {v(rc)}")
    a(f"v_fma_f32 {v(ta)}, -{v(tc)}, {v(sq)}, {v(ta)}"); a(f"v_fma_f32 {v(tb)}, -{v(td)}, {v(sq)}, {v(tb)}")
    a(f"v_fmac_f32 {v(tc)}, {v(ta)}, {v(rc)}"); a(f"v_fmac_f32 {v(td)}, {v(tb)}, {v(rc)}")
    a(f"v_cvt_pk_bf16_f32 {v(dpk)}, {v(tc)}, {v(td)}")

def kernel_head(a, name):
    a.raw(f".globl {name}"); a.raw(".p2align 8"); a.raw(f".type {name},@function"); a.label(name)
def kd(name, nv, ns, acc=None):
    acc = acc or min(256, (nv + 3) // 4 * 4)
    return "\n".join([f".p2align 6", f".amdhsa_kernel {name}", f"  .amdhsa_next_free_vgpr {nv}", f"  .amdhsa_next_free_sgpr {ns}",
        f"  .amdhsa_accum_offset {acc}", "  .amdhsa_group_segment_fixed_size 0", "  .amdhsa_kernarg_size 104",
        "  .amdhsa_user_sgpr_count 2", "  .amdhsa_user_sgpr_kernarg_segment_ptr 1", "  .amdhsa_system_sgpr_workgroup_id_x 1",
        "  .amdhsa_float_denorm_mode_32 3", ".end_amdhsa_kernel"]) + "\n"

def transp_mfma(a, V, T, Aop, ACC, sel_lo, sel_hi, first=False, between=None):
    for cc in range(4):
        for p in range(4):
            a(f"v_perm_b32 {v(T+4*(2*cc)+p)}, {v(V+4*(2*p+1)+cc)}, {v(V+4*(2*p)+cc)}, {s(sel_lo)}")
            a(f"v_perm_b32 {v(T+4*(2*cc+1)+p)}, {v(V+4*(2*p+1)+cc)}, {v(V+4*(2*p)+cc)}, {s(sel_hi)}")
    if between: between()
    for e in range(8):
        c = "0" if first else v(ACC+4*e, 4)
        a(f"v_mfma_f32_16x16x32_bf16 {v(ACC+4*e,4)}, {v(Aop,4)}, {v(T+4*e,4)}, {c}")

def q_produce(a, R, pol):
    W, T, ACC, M = R["W"], R["T"], R["ACC"], R["M"]
    X = [M + i for i in range(8)]
    xr = M + 8
    vo = M + 12; mb = M + 13; sq = M + 14; rc = M + 15
    t0, t1, t2, t3 = T, T + 1, T + 2, T + 3
    a(f"v_lshlrev_b32 {v(vo)}, 4, v0")
    a(f"global_load_dwordx4 {v(xr,4)}, {v(vo)}, s[36:37]")
    a(f"v_lshrrev_b32 {v(t0)}, 4, v0"); a(f"v_lshlrev_b32 {v(t0)}, 13, {v(t0)}")
    a(f"v_and_b32 {v(t1)}, 15, v0"); a(f"v_lshlrev_b32 {v(t1)}, 4, {v(t1)}"); a(f"v_add_u32 {v(vo)}, {v(t0)}, {v(t1)}")
    a("s_lshr_b32 s29, s21, 2")
    a("s_and_b32 s30, s21, 3")
    a("s_lshl_b32 s31, s20, 2"); a("s_add_u32 s31, s31, s30")
    a("s_lshl_b32 s32, s29, 19"); a("s_lshl_b32 s33, s31, 8"); a("s_add_u32 s32, s32, s33")
    for jj in range(16):
        a(f"buffer_load_dwordx4 {v(W+4*jj,4)}, {v(vo)}, s[16:19], s32 offen")
        if jj < 15: a("s_add_u32 s32, s32, 32768")
    a("s_waitcnt vmcnt(16)")
    for i in range(4): unpack(a, X[2*i], X[2*i+1], xr + i)
    ln_stats(a, X, mb, sq, rc, t0, t1, t2)
    a(f"v_lshrrev_b32 {v(t0)}, 2, v0"); a(f"v_lshlrev_b32 {v(t0)}, 6, {v(t0)}")
    a(f"v_and_b32 {v(t1)}, 3, v0"); a(f"v_lshl_add_u32 {v(vo)}, {v(t1)}, 2, {v(t0)}")
    for e in range(4):
        ln_pair(a, X[e], X[e+4], mb, sq, rc, xr + e, t0, t1, t2, t3)
        a(f"ds_write_b32 {v(vo)}, {v(xr+e)} offset:{R['LDS_XN'] + 16*e}")
    a(f"v_lshrrev_b32 {v(t0)}, 4, v0"); a(f"v_lshlrev_b32 {v(t0)}, 4, {v(t0)}")
    a("s_lshl_b32 s33, s29, 7"); a(f"v_add_u32 {v(t0)}, s33, {v(t0)}")
    a("s_waitcnt lgkmcnt(0)")
    a(f"ds_read_b128 {v(X[0],4)}, {v(t0)} offset:{R['LDS_XN']}")
    a(f"ds_read_b128 {v(X[4],4)}, {v(t0)} offset:{R['LDS_XN']+64}")
    a("s_waitcnt vmcnt(8) lgkmcnt(0)")
    transp_mfma(a, W, T, X[0], ACC, 25, 26, first=True)
    a("s_waitcnt vmcnt(0)")
    transp_mfma(a, W + 32, T, X[4], ACC, 25, 26)
    a(f"v_lshlrev_b32 {v(vo)}, 5, v0")
    a("s_lshl_b32 s32, s29, 14"); a("s_lshl_b32 s33, s31, 9"); a("s_add_u32 s32, s32, s33")
    a(f"v_add_u32 {v(vo)}, s32, {v(vo)}")
    for e in range(8): a(f"v_mov_b32 {v(T+e)}, {v(ACC+4*e)}")
    a("s_mov_b64 exec, 0xffff")
    a(f"global_store_dwordx4 {v(vo)}, {v(T,4)}, s[46:47] offset:{WS_QP} {pol}")
    a(f"global_store_dwordx4 {v(vo)}, {v(T+4,4)}, s[46:47] offset:{WS_QP+16} {pol}")
    a("s_mov_b64 exec, -1")

def common_k1_setup(a):
    a("s_load_dwordx8 s[36:43], s[0:1], 0")
    a("s_load_dwordx2 s[44:45], s[0:1], 88")
    a("s_load_dwordx2 s[46:47], s[0:1], 96")
    a("v_lshrrev_b32 v1, 6, v0")
    a("v_readfirstlane_b32 s3, v1")
    a("v_and_b32 v0, 63, v0")
    a("s_and_b32 s20, s2, 7"); a("s_lshr_b32 s21, s2, 3")
    a("s_mov_b32 s25, 0x05040100"); a("s_mov_b32 s26, 0x07060302")
    a(f"s_mov_b32 s27, {f32hex(LOG2E)}"); a(f"s_mov_b32 s28, {f32hex(SCALE)}")

def stamp_end(a, slot, wsreg, t=(60,61,62,63,64)):
    a("s_mov_b64 exec, 1")
    a("s_waitcnt vmcnt(0)")
    a("s_memrealtime s[72:73]")
    a("s_waitcnt lgkmcnt(0)")
    a(f"s_lshl_b32 s74, s2, 4"); a(f"s_add_u32 s74, s74, {WS_STAMP + 0x10000 * slot}")
    a(f"v_mov_b32 {v(t[4])}, s74")
    for i in range(4): a(f"v_mov_b32 {v(t[i])}, s{70+i}")
    a(f"global_store_dwordx4 {v(t[4])}, {v(t[0],4)}, {wsreg}")

def gen_k0(a, name, stamps=False):
    kernel_head(a, name)
    a("s_cmp_ge_u32 s2, 256"); a(f"s_cbranch_scc1 {name}_end")
    if stamps: a("s_memrealtime s[70:71]")
    common_k1_setup(a)
    a("s_waitcnt lgkmcnt(0)")
    a("s_mov_b32 s16, s42"); a("s_mov_b32 s17, s43"); a("s_mov_b32 s18, 0x400000"); a("s_mov_b32 s19, 0x20000")
    R = dict(W=64, T=32, ACC=128, M=8, LDS_XN=0)
    q_produce(a, R, "")
    if stamps: stamp_end(a, 1, "s[46:47]")
    a.label(f"{name}_end"); a("s_endpgm")

def gen_k1(a, name, fused_q, kvpol="nt", stamps=False):
    vK0, vK1, vV0, vV1 = 1, 2, 3, 4
    m, negm, l, lbias, mnew, al, tm = 5, 6, 7, 8, 9, 10, 11
    S = 12; P = 20; C4 = 24; Q = 28; O = 44; T = 76
    KA, VA, KB, VB = 112, 144, 176, 208
    M = 240
    LDS_XN = 0; LDS_Q = 1024; LDS_OM = 2048; LDS_ML = 2048 + 16384
    kernel_head(a, name)
    a("s_cmp_ge_u32 s2, 256"); a(f"s_cbranch_scc1 {name}_end")
    if stamps: a("s_memrealtime s[50:51]")
    common_k1_setup(a)
    a("s_lshl_b32 s29, s3, 13")
    a(f"v_lshlrev_b32 {v(vV0)}, 4, v0"); a(f"v_add_u32 {v(vV0)}, s29, {v(vV0)}"); a(f"v_add_u32 {v(vV1)}, 0x1000, {v(vV0)}")
    a(f"v_and_b32 {v(vK0)}, 3, v0"); a(f"v_lshlrev_b32 {v(vK0)}, 10, {v(vK0)}")
    a(f"v_bfe_u32 {v(tm)}, v0, 2, 2"); a(f"v_lshl_add_u32 {v(vK0)}, {v(tm)}, 8, {v(vK0)}")
    a(f"v_lshrrev_b32 {v(tm)}, 4, v0"); a(f"v_lshl_add_u32 {v(vK0)}, {v(tm)}, 4, {v(vK0)}")
    a(f"v_add_u32 {v(vK0)}, s29, {v(vK0)}"); a(f"v_add_u32 {v(vK1)}, 0x1000, {v(vK0)}")
    a("s_lshl_b32 s29, s20, 24"); a("s_lshl_b32 s30, s21, 19"); a("s_add_u32 s29, s29, s30")
    a("s_waitcnt lgkmcnt(0)")
    a("s_add_u32 s8, s38, s29"); a("s_addc_u32 s9, s39, 0"); a("s_mov_b32 s10, 0x80000"); a("s_mov_b32 s11, 0x20000")
    a("s_add_u32 s12, s40, s29"); a("s_addc_u32 s13, s41, 0"); a("s_mov_b32 s14, 0x80000"); a("s_mov_b32 s15, 0x20000")
    a("s_mov_b32 s16, s42"); a("s_mov_b32 s17, s43"); a("s_mov_b32 s18, 0x400000"); a("s_mov_b32 s19, 0x20000")
    def loadK(K):
        for j in range(8):
            a(f"buffer_load_dwordx4 {v(K+4*j,4)}, {v(vK0 if j < 4 else vK1)}, s[8:11], 0 offen offset:{(j&3)*64} {kvpol}")
        a(f"v_add_u32 {v(vK0)}, 0x10000, {v(vK0)}"); a(f"v_add_u32 {v(vK1)}, 0x10000, {v(vK1)}")
    def loadV(V):
        for j in range(8):
            a(f"buffer_load_dwordx4 {v(V+4*j,4)}, {v(vV0 if j < 4 else vV1)}, s[12:15], 0 offen offset:{(j&3)*1024} {kvpol}")
        a(f"v_add_u32 {v(vV0)}, 0x10000, {v(vV0)}"); a(f"v_add_u32 {v(vV1)}, 0x10000, {v(vV1)}")
    a("s_cmp_lg_u32 s3, 0"); a(f"s_cbranch_scc1 {name}_pre")
    pol = "sc1" if fused_q else ""
    if fused_q:
        R = dict(W=KA, T=T, ACC=O, M=M, LDS_XN=LDS_XN)
        q_produce(a, R, pol)
        a("s_waitcnt vmcnt(0)")
        a("s_lshl_b32 s29, s20, 2")
        a(f"v_mov_b32 {v(M)}, s29"); a(f"v_mov_b32 {v(M+1)}, 1")
        a("s_mov_b64 exec, 1")
        a(f"global_atomic_add {v(M)}, {v(M+1)}, s[44:45]")
        a.label(f"{name}_poll")
        a(f"global_load_dword {v(M+2)}, {v(M)}, s[44:45] sc1")
        a("s_waitcnt vmcnt(0)")
        a(f"v_readfirstlane_b32 s29, {v(M+2)}")
        a("s_cmp_lt_u32 s29, 32")
        a(f"s_cbranch_scc1 {name}_poll")
        a("s_mov_b64 exec, -1")
    a("s_lshl_b32 s29, s20, 11")
    a(f"v_lshl_add_u32 {v(M)}, v0, 4, s29")
    for p in range(8):
        for hf in range(2):
            a(f"global_load_dwordx4 {v(KA+8*p+4*hf,4)}, {v(M)}, s[46:47] offset:{hf*1024} {pol}")
        a(f"v_add_u32 {v(M)}, 0x4000, {v(M)}")
    for p in range(1, 8):
        a(f"s_waitcnt vmcnt({14-2*p})")
        for i in range(8): a(f"v_add_f32 {v(KA+i)}, {v(KA+i)}, {v(KA+8*p+i)}")
    for i in range(4): a(f"v_cvt_pk_bf16_f32 {v(M+4+i)}, {v(KA+2*i)}, {v(KA+2*i+1)}")
    a(f"v_lshlrev_b32 {v(M)}, 3, v0")
    a(f"ds_write_b64 {v(M)}, {v(M+4,2)} offset:{LDS_Q}")
    a(f"ds_write_b64 {v(M)}, {v(M+6,2)} offset:{LDS_Q+512}")
    a.fence()
    a.label(f"{name}_pre")
    loadK(KA); loadV(VA); loadK(KB); loadV(VB)
    a(f"v_mov_b32 {v(m)}, 0xff800000"); a(f"v_mov_b32 {v(l)}, 0"); a(f"v_mov_b32 {v(negm)}, 0")
    for i in range(32): a(f"v_mov_b32 {v(O+i)}, 0")
    a(f"v_bfe_u32 {v(tm)}, v0, 2, 2"); a(f"v_lshrrev_b32 {v(al)}, 4, v0")
    a(f"v_cmp_eq_u32 vcc, {v(tm)}, {v(al)}")
    a(f"v_mov_b32 {v(tm)}, 0xff800000")
    a(f"v_cndmask_b32 {v(lbias)}, {v(tm)}, 0, vcc")
    a(f"v_and_b32 {v(tm)}, 3, v0"); a(f"v_lshlrev_b32 {v(tm)}, 8, {v(tm)}"); a(f"v_lshl_add_u32 {v(tm)}, {v(al)}, 4, {v(tm)}")
    a("s_waitcnt lgkmcnt(0)")
    a("s_barrier")
    for t in range(4): a(f"ds_read_b128 {v(Q+4*t,4)}, {v(tm)} offset:{LDS_Q+64*t}")
    a("s_mov_b32 s23, 0")
    a("s_waitcnt lgkmcnt(0)")
    if stamps: a("s_memrealtime s[52:53]")
    a.fence()
    a.label(f"{name}_loop")
    def tile(K, V, tag):
        a("s_waitcnt vmcnt(24)")
        for t in range(4):
            for g in range(2):
                c = "0" if t == 0 else v(S+4*g, 4)
                a(f"v_mfma_f32_16x16x32_bf16 {v(S+4*g,4)}, {v(K+16*g+4*t,4)}, {v(Q+4*t,4)}, {c}")
        loadK(K)
        for i in range(4): a(f"v_cvt_pk_bf16_f32 {v(C4+i)}, {v(S+2*i)}, {v(S+2*i+1)}")
        for i in range(4): unpack(a, S+2*i, S+2*i+1, C4+i)
        for i in range(8): a(f"v_mul_f32 {v(S+i)}, s28, {v(S+i)}")
        for i in range(4): a(f"v_cvt_pk_bf16_f32 {v(C4+i)}, {v(S+2*i)}, {v(S+2*i+1)}")
        for i in range(4): unpack(a, S+2*i, S+2*i+1, C4+i)
        a(f"v_max3_f32 {v(mnew)}, {v(m)}, {v(S)}, {v(S+1)}")
        for i in range(1, 4): a(f"v_max3_f32 {v(mnew)}, {v(mnew)}, {v(S+2*i)}, {v(S+2*i+1)}")
        a(f"v_cmp_gt_f32 vcc, {v(mnew)}, {v(m)}")
        a(f"s_cbranch_vccz {name}_skip{tag}")
        a(f"v_sub_f32 {v(al)}, {v(m)}, {v(mnew)}"); a(f"v_mul_f32 {v(al)}, s27, {v(al)}"); a(f"v_exp_f32 {v(al)}, {v(al)}")
        a(f"v_mov_b32 {v(m)}, {v(mnew)}")
        a(f"v_fma_f32 {v(negm)}, {v(mnew)}, -s27, {v(lbias)}")
        a(f"v_mul_f32 {v(l)}, {v(l)}, {v(al)}")
        for e in range(8):
            for r in range(4):
                a(f"v_mul_f32_dpp {v(O+4*e+r)}, {v(al)}, {v(O+4*e+r)} quad_perm:[{r},{r},{r},{r}] {DPPM}")
        a.label(f"{name}_skip{tag}")
        for i in range(8): a(f"v_fma_f32 {v(S+i)}, {v(S+i)}, s27, {v(negm)}")
        for i in range(8): a(f"v_exp_f32 {v(S+i)}, {v(S+i)}")
        for i in range(4): a(f"v_cvt_pk_bf16_f32 {v(P+i)}, {v(S+2*i)}, {v(S+2*i+1)}")
        for i in range(4): a(f"v_add_f32 {v(C4+i)}, {v(S+2*i)}, {v(S+2*i+1)}")
        a(f"v_add_f32 {v(C4)}, {v(C4)}, {v(C4+1)}"); a(f"v_add_f32 {v(C4+2)}, {v(C4+2)}, {v(C4+3)}")
        a(f"v_add_f32 {v(C4)}, {v(C4)}, {v(C4+2)}"); a(f"v_add_f32 {v(l)}, {v(l)}, {v(C4)}")
        a("s_waitcnt vmcnt(24)")
        transp_mfma(a, V, T, P, O, 25, 26, between=lambda: loadV(V))
    tile(KA, VA, "A")
    tile(KB, VB, "B")
    a("s_add_u32 s23, s23, 1"); a("s_cmp_lt_u32 s23, 4")
    a(f"s_cbranch_scc1 {name}_loop")
    a.fence()
    if stamps: a("s_memrealtime s[54:55]")
    Mw = mnew
    a(f"v_mov_b32 {v(Mw)}, {v(m)}")
    a(f"v_mov_b32 {v(tm)}, {v(Mw)}"); a(f"v_permlane16_swap_b32 {v(Mw)}, {v(tm)}"); a(f"v_max_f32 {v(Mw)}, {v(Mw)}, {v(tm)}")
    a(f"v_mov_b32 {v(tm)}, {v(Mw)}"); a(f"v_permlane32_swap_b32 {v(Mw)}, {v(tm)}"); a(f"v_max_f32 {v(Mw)}, {v(Mw)}, {v(tm)}")
    a(f"v_sub_f32 {v(al)}, {v(m)}, {v(Mw)}"); a(f"v_mul_f32 {v(al)}, s27, {v(al)}"); a(f"v_exp_f32 {v(al)}, {v(al)}")
    a(f"v_mul_f32 {v(l)}, {v(l)}, {v(al)}")
    for e in range(8):
        for r in range(4):
            a(f"v_mul_f32_dpp {v(O+4*e+r)}, {v(al)}, {v(O+4*e+r)} quad_perm:[{r},{r},{r},{r}] {DPPM}")
    allreduce(a, "v_add_f32", l, tm, start=4)
    for e in range(8):
        a(f"v_permlane32_swap_b32 {v(O+4*e)}, {v(O+4*e+2)}"); a(f"v_permlane32_swap_b32 {v(O+4*e+1)}, {v(O+4*e+3)}")
    for e in range(8):
        a(f"v_add_f32 {v(O+4*e)}, {v(O+4*e)}, {v(O+4*e+2)}"); a(f"v_add_f32 {v(O+4*e+1)}, {v(O+4*e+1)}, {v(O+4*e+3)}")
    for e in range(8): a(f"v_permlane16_swap_b32 {v(O+4*e)}, {v(O+4*e+1)}")
    for e in range(8): a(f"v_add_f32 {v(T+e)}, {v(O+4*e)}, {v(O+4*e+1)}")
    a("s_lshl_b32 s29, s3, 11")
    a(f"v_lshl_add_u32 {v(tm)}, v0, 5, s29")
    a(f"ds_write_b128 {v(tm)}, {v(T,4)} offset:{LDS_OM}"); a(f"ds_write_b128 {v(tm)}, {v(T+4,4)} offset:{LDS_OM+16}")
    a("s_lshl_b32 s29, s3, 3")
    a(f"v_lshl_add_u32 {v(tm)}, v0, 6, s29")
    a(f"v_mov_b32 {v(S)}, {v(Mw)}"); a(f"v_mov_b32 {v(S+1)}, {v(l)}")
    a("s_mov_b64 exec, 0xf")
    a(f"ds_write_b64 {v(tm)}, {v(S,2)} offset:{LDS_ML}")
    a("s_mov_b64 exec, -1")
    a("s_waitcnt lgkmcnt(0)")
    a("s_barrier")
    a("s_lshr_b32 s29, s3, 1")
    a("s_lshl_b32 s30, s29, 6"); a(f"v_mov_b32 {v(tm)}, s30")
    for i in range(4): a(f"ds_read_b128 {v(T+4*i,4)}, {v(tm)} offset:{LDS_ML+16*i}")
    a("s_lshl_b32 s30, s3, 8")
    a(f"v_lshl_add_u32 {v(al)}, v0, 2, s30")
    for w in range(0, 8, 2):
        a(f"ds_read2st64_b32 {v(T+16+w,2)}, {v(al)} offset0:{LDS_OM//256 + 8*w} offset1:{LDS_OM//256 + 8*(w+1)}")
    a("s_waitcnt lgkmcnt(4)")
    Mx = mnew
    a(f"v_max3_f32 {v(Mx)}, {v(T)}, {v(T+2)}, {v(T+4)}"); a(f"v_max3_f32 {v(Mx)}, {v(Mx)}, {v(T+6)}, {v(T+8)}")
    a(f"v_max3_f32 {v(Mx)}, {v(Mx)}, {v(T+10)}, {v(T+12)}"); a(f"v_max_f32 {v(Mx)}, {v(Mx)}, {v(T+14)}")
    for w in range(8):
        a(f"v_sub_f32 {v(T+2*w)}, {v(T+2*w)}, {v(Mx)}")
    for w in range(8): a(f"v_mul_f32 {v(T+2*w)}, s27, {v(T+2*w)}")
    for w in range(8): a(f"v_exp_f32 {v(T+2*w)}, {v(T+2*w)}")
    a(f"v_mul_f32 {v(S+1)}, {v(T)}, {v(T+1)}")
    for w in range(1, 8): a(f"v_fmac_f32 {v(S+1)}, {v(T+2*w)}, {v(T+2*w+1)}")
    a("s_waitcnt lgkmcnt(0)")
    a(f"v_mul_f32 {v(S+2)}, {v(T)}, {v(T+16)}")
    for w in range(1, 8): a(f"v_fmac_f32 {v(S+2)}, {v(T+2*w)}, {v(T+16+w)}")
    a(f"v_mov_b32 {v(S)}, {v(Mx)}")
    a("s_lshl_b32 s30, s20, 2"); a("s_add_u32 s30, s30, s29")
    a("s_lshl_b32 s30, s30, 5"); a("s_add_u32 s30, s30, s21")
    a("s_lshl_b32 s31, s30, 9"); a("s_and_b32 s32, s3, 1"); a("s_lshl_b32 s32, s32, 8"); a("s_add_u32 s31, s31, s32")
    a(f"s_add_u32 s31, s31, {WS_OP}")
    a(f"v_lshl_add_u32 {v(tm)}, v0, 2, s31")
    a(f"global_store_dword {v(tm)}, {v(S+2)}, s[46:47]")
    a("s_lshl_b32 s31, s30, 3"); a(f"s_add_u32 s31, s31, {WS_ML}")
    a(f"v_mov_b32 {v(tm)}, s31")
    a("s_mov_b64 exec, 1")
    a("s_bitcmp1_b32 s3, 0"); a(f"s_cbranch_scc1 {name}_noml")
    a(f"global_store_dwordx2 {v(tm)}, {v(S,2)}, s[46:47]")
    a.label(f"{name}_noml")
    if stamps:
        a("s_waitcnt vmcnt(0)")
        a("s_memrealtime s[56:57]")
        a("s_waitcnt lgkmcnt(0)")
        a("s_lshl_b32 s29, s2, 3"); a("s_add_u32 s29, s29, s3"); a("s_lshl_b32 s29, s29, 5"); a(f"s_add_u32 s29, s29, {WS_STAMP}")
        a(f"v_mov_b32 {v(tm)}, s29")
        for i in range(8): a(f"v_mov_b32 {v(T+i)}, s{50+i}")
        a(f"global_store_dwordx4 {v(tm)}, {v(T,4)}, s[46:47]"); a(f"global_store_dwordx4 {v(tm)}, {v(T+4,4)}, s[46:47] offset:16")
    a.label(f"{name}_end"); a("s_endpgm")
    return LDS_ML + 256

def gen_k3(a, name, stamps=False):
    kernel_head(a, name)
    a("s_cmp_ge_u32 s2, 256"); a(f"s_cbranch_scc1 {name}_end")
    if stamps: a("s_memrealtime s[70:71]")
    a("s_load_dwordx2 s[4:5], s[0:1], 32"); a("s_load_dwordx2 s[6:7], s[0:1], 96")
    a("v_lshrrev_b32 v1, 6, v0"); a("v_readfirstlane_b32 s3, v1")
    a("v_and_b32 v2, 63, v0")
    a("s_and_b32 s8, s2, 7"); a("s_bfe_u32 s9, s2, 0x20003"); a("s_lshr_b32 s10, s2, 5")
    a("s_lshl_b32 s8, s8, 2"); a("s_add_u32 s8, s8, s9")
    a(f"s_mov_b32 s27, {f32hex(LOG2E)}")
    WO = 16; OO = 32; ML = 48; t0, t1, t2, t3 = 4, 5, 6, 7; Cj = 52; ACC = 56; orow = 64; U = 72
    a("s_lshl_b32 s11, s8, 17"); a("s_lshl_b32 s12, s3, 13"); a("s_add_u32 s11, s11, s12"); a("s_lshl_b32 s12, s10, 7"); a("s_add_u32 s11, s11, s12")
    a(f"v_lshrrev_b32 {v(t0)}, 3, v2"); a(f"v_lshlrev_b32 {v(t0)}, 10, {v(t0)}"); a(f"v_and_b32 {v(t1)}, 7, v2")
    a(f"v_lshl_add_u32 {v(t0)}, {v(t1)}, 4, {v(t0)}"); a(f"v_add_u32 {v(t0)}, s11, {v(t0)}")
    a(f"v_and_b32 {v(t1)}, 31, v0"); a("s_lshl_b32 s11, s8, 8"); a(f"s_add_u32 s11, s11, {WS_ML}")
    a(f"v_lshl_add_u32 {v(t2)}, {v(t1)}, 3, s11")
    a("s_lshl_b32 s11, s8, 14"); a(f"s_add_u32 s11, s11, {WS_OP}")
    a(f"v_lshrrev_b32 {v(t3)}, 5, v0"); a(f"v_lshlrev_b32 {v(t3)}, 11, {v(t3)}"); a(f"v_lshl_add_u32 {v(t3)}, {v(t1)}, 4, {v(t3)}"); a(f"v_add_u32 {v(t3)}, s11, {v(t3)}")
    a("s_waitcnt lgkmcnt(0)")
    a(f"global_load_dwordx2 {v(ML,2)}, {v(t2)}, s[6:7]")
    for i in range(4): a(f"global_load_dwordx4 {v(OO+4*i,4)}, {v(t3)}, s[6:7] offset:{512*i}")
    for it in range(4):
        a(f"global_load_dwordx4 {v(WO+4*it,4)}, {v(t0)}, s[4:5]")
        if it < 3: a(f"v_add_u32 {v(t0)}, 0x8000, {v(t0)}")
    a("s_waitcnt vmcnt(8)")
    a(f"v_mov_b32 {v(t0)}, {v(ML)}")
    allreduce(a, "v_max_f32", t0, t2, lanes=32)
    a(f"v_sub_f32 {v(t0)}, {v(ML)}, {v(t0)}"); a(f"v_mul_f32 {v(t0)}, s27, {v(t0)}"); a(f"v_exp_f32 {v(t0)}, {v(t0)}")
    a(f"v_mul_f32 {v(t3)}, {v(t0)}, {v(ML+1)}")
    allreduce(a, "v_add_f32", t3, t2, lanes=32)
    a(f"v_rcp_f32 {v(t2)}, {v(t3)}")
    a(f"v_mul_f32 {v(t0)}, {v(t0)}, {v(t2)}")
    a("s_lshl_b32 s11, s3, 7"); a(f"v_lshl_add_u32 {v(t2)}, {v(t1)}, 2, s11")
    a(f"ds_write_b32 {v(t2)}, {v(t0)}")
    a(f"v_lshrrev_b32 {v(t3)}, 5, v0"); a(f"v_lshl_add_u32 {v(t3)}, {v(t3)}, 4, s11")
    a("s_waitcnt lgkmcnt(0)")
    a(f"ds_read_b128 {v(Cj,4)}, {v(t3)}")
    a("s_waitcnt vmcnt(4) lgkmcnt(0)")
    for d in range(4): a(f"v_mul_f32 {v(ACC+d)}, {v(Cj)}, {v(OO+d)}")
    for i in range(1, 4):
        for d in range(4): a(f"v_fmac_f32 {v(ACC+d)}, {v(Cj+i)}, {v(OO+4*i+d)}")
    a(f"v_permlane32_swap_b32 {v(ACC)}, {v(ACC+1)}"); a(f"v_permlane32_swap_b32 {v(ACC+2)}, {v(ACC+3)}")
    a(f"v_add_f32 {v(ACC)}, {v(ACC)}, {v(ACC+1)}"); a(f"v_add_f32 {v(ACC+1)}, {v(ACC+2)}, {v(ACC+3)}")
    a("s_lshl_b32 s11, s3, 9")
    a(f"v_lshrrev_b32 {v(t3)}, 5, v2"); a(f"v_lshl_add_u32 {v(t3)}, {v(t1)}, 2, {v(t3)}"); a(f"v_lshl_add_u32 {v(t3)}, {v(t3)}, 2, s11")
    a(f"ds_write2_b32 {v(t3)}, {v(ACC)}, {v(ACC+1)} offset0:128 offset1:130")
    a("s_lshl_b32 s11, s3, 5"); a(f"v_lshrrev_b32 {v(t3)}, 3, v2"); a(f"v_lshl_add_u32 {v(t3)}, {v(t3)}, 2, s11")
    a("s_waitcnt lgkmcnt(0)"); a("s_barrier")
    for it in range(4):
        a(f"ds_read2st64_b32 {v(U+4*it,2)}, {v(t3)} offset0:2 offset1:4")
        a(f"ds_read2st64_b32 {v(U+4*it+2,2)}, {v(t3)} offset0:6 offset1:8")
        if it < 3: a(f"v_add_u32 {v(t3)}, 128, {v(t3)}")
    a("s_waitcnt lgkmcnt(0)")
    for it in range(4):
        a(f"v_add_f32 {v(U+4*it)}, {v(U+4*it)}, {v(U+4*it+1)}"); a(f"v_add_f32 {v(U+4*it+2)}, {v(U+4*it+2)}, {v(U+4*it+3)}")
        a(f"v_add_f32 {v(orow+it)}, {v(U+4*it)}, {v(U+4*it+2)}")
    rne2(a, orow, orow+1, orow, orow+1, t0); rne2(a, orow+2, orow+3, orow+2, orow+3, t0)
    a("s_waitcnt vmcnt(0)")
    for it in range(4):
        for c in range(4): unpack(a, U+2*c, U+2*c+1, WO+4*it+c)
        for c in range(8):
            a(f"v_mul_f32 {v(ACC+c)}, {v(orow+it)}, {v(U+c)}" if it == 0 else f"v_fmac_f32 {v(ACC+c)}, {v(orow+it)}, {v(U+c)}")
    for k in range(4): a(f"v_permlane32_swap_b32 {v(ACC+2*k)}, {v(ACC+2*k+1)}")
    for k in range(4): a(f"v_add_f32 {v(U+k)}, {v(ACC+2*k)}, {v(ACC+2*k+1)}")
    for k in range(2): a(f"v_permlane16_swap_b32 {v(U+2*k)}, {v(U+2*k+1)}")
    for k in range(2): a(f"v_add_f32 {v(ACC+k)}, {v(U+2*k)}, {v(U+2*k+1)}")
    for k in range(2): a(f"v_add_f32_dpp {v(ACC+k)}, {v(ACC+k)}, {v(ACC+k)} row_ror:8 {DPPM}")
    a(f"v_and_b32 {v(t0)}, 8, v2"); a(f"v_cmp_ne_u32 vcc, 0, {v(t0)}")
    a(f"v_and_b32 {v(t1)}, 7, v2"); a(f"v_lshlrev_b32 {v(t1)}, 3, {v(t1)}"); a(f"v_lshrrev_b32 {v(t0)}, 1, {v(t0)}"); a(f"v_add_u32 {v(t1)}, {v(t1)}, {v(t0)}")
    a(f"v_bfe_u32 {v(t0)}, v2, 4, 1"); a(f"v_lshl_add_u32 {v(t1)}, {v(t0)}, 1, {v(t1)}")
    a(f"v_lshrrev_b32 {v(t0)}, 5, v2"); a(f"v_add_u32 {v(t1)}, {v(t1)}, {v(t0)}")
    a(f"v_cndmask_b32 {v(ACC)}, {v(ACC)}, {v(ACC+1)}, vcc")
    a("s_lshl_b32 s11, s3, 8"); a(f"v_lshl_add_u32 {v(t1)}, {v(t1)}, 2, s11")
    a(f"ds_write_b32 {v(t1)}, {v(ACC)} offset:2560")
    a("s_waitcnt lgkmcnt(0)"); a("s_barrier")
    a("s_cmp_lg_u32 s3, 0"); a(f"s_cbranch_scc1 {name}_end")
    a(f"v_lshlrev_b32 {v(t1)}, 2, v2")
    a(f"ds_read2st64_b32 {v(U,2)}, {v(t1)} offset0:10 offset1:11"); a(f"ds_read2st64_b32 {v(U+2,2)}, {v(t1)} offset0:12 offset1:13")
    a("s_lshl_b32 s11, s8, 11"); a("s_lshl_b32 s12, s10, 8"); a("s_add_u32 s11, s11, s12"); a(f"s_add_u32 s11, s11, {WS_YP}")
    a(f"v_add_u32 {v(t1)}, s11, {v(t1)}")
    a("s_waitcnt lgkmcnt(0)")
    a(f"v_add_f32 {v(U)}, {v(U)}, {v(U+1)}"); a(f"v_add_f32 {v(U+2)}, {v(U+2)}, {v(U+3)}"); a(f"v_add_f32 {v(U)}, {v(U)}, {v(U+2)}")
    a(f"global_store_dword {v(t1)}, {v(U)}, s[6:7]")
    if stamps: stamp_end(a, 2, "s[6:7]")
    a.label(f"{name}_end"); a("s_endpgm")
    return 2560 + 1024

def gen_k4(a, name, stamps=False):
    kernel_head(a, name)
    a("s_cmp_ge_u32 s2, 256"); a(f"s_cbranch_scc1 {name}_end")
    if stamps: a("s_memrealtime s[70:71]")
    a("s_load_dwordx2 s[4:5], s[0:1], 0")
    a("s_load_dwordx8 s[8:15], s[0:1], 48")
    a("s_load_dwordx2 s[16:17], s[0:1], 80")
    a("s_load_dwordx2 s[6:7], s[0:1], 96")
    a("v_lshrrev_b32 v1, 6, v0"); a("v_readfirstlane_b32 s3, v1"); a("v_and_b32 v2, 63, v0")
    Y = 16; W1, B1, W2 = 8, 9, 10; XR = 11; t0, t1, t2, t3 = 4, 5, 6, 7; X = [32+i for i in range(8)]; mb, sq, rc = 40, 41, 42; PK = 44; U = 48
    LP = 0; LH = 32768; LB = LH + 2048; LR = LB + 64
    a("s_lshl_b32 s18, s3, 12"); a(f"s_add_u32 s18, s18, {WS_YP}")
    a(f"v_lshl_add_u32 {v(t0)}, v2, 4, s18")
    a(f"v_lshlrev_b32 {v(t1)}, 2, v0")
    a(f"v_min_u32 {v(t1)}, {895*4}, {v(t1)}")
    a(f"v_and_b32 {v(t2)}, 511, v0"); a(f"v_lshlrev_b32 {v(t2)}, 1, {v(t2)}")
    a("s_waitcnt lgkmcnt(0)")
    for i in range(4): a(f"global_load_dwordx4 {v(Y+4*i,4)}, {v(t0)}, s[6:7] offset:{1024*i}")
    a(f"global_load_ushort {v(XR)}, {v(t2)}, s[4:5]")
    a(f"global_load_dword {v(W1)}, {v(t1)}, s[8:9]"); a(f"global_load_dword {v(B1)}, {v(t1)}, s[10:11]"); a(f"global_load_dword {v(W2)}, {v(t1)}, s[12:13]")
    a("s_load_dword s20, s[14:15], 0")
    a("s_waitcnt vmcnt(4)")
    for i in range(8): a(f"v_add_f32 {v(Y+i)}, {v(Y+i)}, {v(Y+8+i)}")
    a("s_lshl_b32 s18, s3, 11"); a(f"v_lshl_add_u32 {v(t0)}, v2, 4, s18")
    a(f"ds_write_b128 {v(t0)}, {v(Y,4)} offset:{LP}"); a(f"ds_write_b128 {v(t0)}, {v(Y+4,4)} offset:{LP+1024}")
    a("s_waitcnt lgkmcnt(0)"); a("s_barrier")
    a("s_cmp_ge_u32 s3, 8"); a(f"s_cbranch_scc1 {name}_b2")
    a(f"v_lshlrev_b32 {v(t0)}, 2, v0")
    for i in range(8): a(f"ds_read2st64_b32 {v(Y+2*i,2)}, {v(t0)} offset0:{16*i} offset1:{16*i+8}")
    a("s_waitcnt lgkmcnt(0)")
    for i in range(8): a(f"v_add_f32 {v(Y+2*i)}, {v(Y+2*i)}, {v(Y+2*i+1)}")
    for i in range(4): a(f"v_add_f32 {v(Y+4*i)}, {v(Y+4*i)}, {v(Y+4*i+2)}")
    a(f"v_add_f32 {v(Y)}, {v(Y)}, {v(Y+4)}"); a(f"v_add_f32 {v(Y+8)}, {v(Y+8)}, {v(Y+12)}"); a(f"v_add_f32 {v(Y)}, {v(Y)}, {v(Y+8)}")
    rne1(a, Y, Y, t1)
    a("s_waitcnt vmcnt(3)")
    a(f"v_lshlrev_b32 {v(XR)}, 16, {v(XR)}"); a(f"v_add_f32 {v(Y)}, {v(Y)}, {v(XR)}")
    rne1(a, Y, Y, t1)
    a(f"ds_write_b32 {v(t0)}, {v(Y)} offset:{LH}")
    a("s_waitcnt lgkmcnt(0)")
    a.label(f"{name}_b2")
    a("s_barrier")
    a("s_cmp_lg_u32 s3, 0"); a(f"s_cbranch_scc1 {name}_b3")
    a(f"v_lshlrev_b32 {v(t0)}, 5, v2")
    a(f"ds_read_b128 {v(X[0],4)}, {v(t0)} offset:{LH}"); a(f"ds_read_b128 {v(X[4],4)}, {v(t0)} offset:{LH+16}")
    a("s_waitcnt lgkmcnt(0)")
    ln_stats(a, X, mb, sq, rc, t0, t1, t2)
    for i in range(4):
        ln_pair(a, X[2*i], X[2*i+1], mb, sq, rc, PK, t0, t1, t2, t3)
        unpack(a, X[2*i], X[2*i+1], PK)
    ln_stats(a, X, mb, sq, rc, t0, t1, t2)
    for i in range(4):
        ln_pair(a, X[2*i], X[2*i+1], mb, sq, rc, PK+i, t0, t1, t2, t3)
    a(f"v_lshlrev_b32 {v(t0)}, 4, v2")
    a(f"ds_write_b128 {v(t0)}, {v(PK,4)} offset:{LP}")
    a("s_waitcnt lgkmcnt(0)")
    a.label(f"{name}_b3")
    a("s_barrier")
    a("s_lshl_b32 s18, s2, 2"); a(f"v_mov_b32 {v(t0)}, s18")
    a(f"ds_read_b32 {v(t1)}, {v(t0)} offset:{LP}")
    a("s_waitcnt vmcnt(0) lgkmcnt(0)")
    H0, H1 = 12, 13
    unpack(a, H0, H1, t1)
    w1a, w1b, b1a, b1b, w2a, w2b = 14, 15, 16, 17, 18, 19
    unpack(a, w1a, w1b, W1); unpack(a, b1a, b1b, B1); unpack(a, w2a, w2b, W2)
    a(f"v_cmp_gt_u32 vcc, 896, v0")
    a(f"v_cndmask_b32 {v(w2a)}, 0, {v(w2a)}, vcc"); a(f"v_cndmask_b32 {v(w2b)}, 0, {v(w2b)}, vcc")
    c0 = -2.0 * LOG2E * 0.7978845608028654; c1 = c0 * 0.044715
    a(f"s_mov_b32 s21, {f32hex(c0)}"); a(f"s_mov_b32 s22, {f32hex(c1)}")
    u = [U+i for i in range(4)]; w = [U+4+i for i in range(4)]; z = [U+8+i for i in range(4)]
    a(f"v_mul_f32 {v(u[0])}, {v(H0)}, {v(w1a)}"); a(f"v_mul_f32 {v(u[1])}, {v(H0)}, {v(w1b)}")
    a(f"v_mul_f32 {v(u[2])}, {v(H1)}, {v(w1a)}"); a(f"v_mul_f32 {v(u[3])}, {v(H1)}, {v(w1b)}")
    rne2(a, u[0], u[1], u[0], u[1], t0); rne2(a, u[2], u[3], u[2], u[3], t1)
    a(f"v_add_f32 {v(u[0])}, {v(u[0])}, {v(b1a)}"); a(f"v_add_f32 {v(u[1])}, {v(u[1])}, {v(b1b)}")
    a(f"v_add_f32 {v(u[2])}, {v(u[2])}, {v(b1a)}"); a(f"v_add_f32 {v(u[3])}, {v(u[3])}, {v(b1b)}")
    rne2(a, u[0], u[1], u[0], u[1], t0); rne2(a, u[2], u[3], u[2], u[3], t1)
    a(f"v_mov_b32 {v(t2)}, s21")
    for i in range(4): a(f"v_mul_f32 {v(w[i])}, {v(u[i])}, {v(u[i])}")
    for i in range(4): a(f"v_fma_f32 {v(w[i])}, {v(w[i])}, s22, {v(t2)}")
    for i in range(4): a(f"v_mul_f32 {v(w[i])}, {v(w[i])}, {v(u[i])}")
    for i in range(4): a(f"v_exp_f32 {v(w[i])}, {v(w[i])}")
    for i in range(4): a(f"v_add_f32 {v(w[i])}, 1.0, {v(w[i])}")
    for i in range(4): a(f"v_rcp_f32 {v(w[i])}, {v(w[i])}")
    for i in range(4): a(f"v_mul_f32 {v(u[i])}, {v(u[i])}, {v(w[i])}")
    rne2(a, u[0], u[1], u[0], u[1], t0); rne2(a, u[2], u[3], u[2], u[3], t1)
    a(f"v_mul_f32 {v(z[0])}, {v(u[0])}, {v(w2a)}"); a(f"v_mul_f32 {v(z[1])}, {v(u[2])}, {v(w2a)}")
    a(f"v_fmac_f32 {v(z[0])}, {v(u[1])}, {v(w2b)}"); a(f"v_fmac_f32 {v(z[1])}, {v(u[3])}, {v(w2b)}")
    a(f"v_permlane32_swap_b32 {v(z[0])}, {v(z[1])}"); a(f"v_add_f32 {v(z[0])}, {v(z[0])}, {v(z[1])}")
    allreduce(a, "v_add_f32", z[0], t0, lanes=32)
    a("s_lshl_b32 s18, s3, 2"); a(f"v_lshl_add_u32 {v(t0)}, v2, 1, s18")
    a("s_mov_b32 s24, 1"); a("s_mov_b32 s25, 1"); a("s_mov_b64 exec, s[24:25]")
    a(f"ds_write_b32 {v(t0)}, {v(z[0])} offset:{LR}")
    a("s_mov_b64 exec, -1")
    a("s_waitcnt lgkmcnt(0)"); a("s_barrier")
    a("s_cmp_lg_u32 s3, 0"); a(f"s_cbranch_scc1 {name}_end")
    a(f"v_lshrrev_b32 {v(t0)}, 5, v2"); a(f"v_and_b32 {v(t1)}, 15, v2"); a(f"v_lshlrev_b32 {v(t1)}, 2, {v(t1)}"); a(f"v_lshl_add_u32 {v(t1)}, {v(t0)}, 6, {v(t1)}")
    a(f"ds_read_b32 {v(z[0])}, {v(t1)} offset:{LR}")
    a("s_lshl_b32 s18, s2, 3"); a(f"v_lshl_add_u32 {v(t2)}, {v(t0)}, 2, s18")
    a(f"ds_read_b32 {v(z[1])}, {v(t2)} offset:{LH}")
    a("s_lshl_b32 s20, s20, 16")
    a("s_waitcnt lgkmcnt(0)")
    allreduce(a, "v_add_f32", z[0], t3, lanes=16)
    rne1(a, z[0], z[0], t3)
    a(f"v_add_f32 {v(z[0])}, s20, {v(z[0])}")
    rne1(a, z[0], z[0], t3)
    a(f"v_add_f32 {v(z[0])}, {v(z[0])}, {v(z[1])}")
    a(f"v_cvt_pk_bf16_f32 {v(z[0])}, {v(z[0])}, {v(z[0])}")
    a(f"v_lshrrev_b32 {v(t2)}, 1, {v(t2)}")
    a("s_mov_b64 exec, s[24:25]")
    a(f"global_store_short {v(t2)}, {v(z[0])}, s[16:17]")
    if stamps: stamp_end(a, 3, "s[6:7]")
    a.label(f"{name}_end"); a("s_endpgm")
    return LR + 128

def build(fn, fused_q=False, kvpol="nt", stamps=False):
    parts = []; kds = []; launches = []
    def mk(name, fnc, grid, block, **kw):
        a = Asm(); lds = fnc(a, name, **kw) or 1024
        parts.append(a.text()); kds.append(kd(name, a.maxv + 1, max(a.maxs + 1, 16)))
        launches.append(f"; @launch kernel={name} grid=({grid},1,1) block=({block},1,1) lds={lds}")
    if not fused_q: mk("qproj_kernel", gen_k0, 256, 64, stamps=stamps)
    mk("attn_kernel", gen_k1, 256, 512, fused_q=fused_q, kvpol=kvpol, stamps=stamps)
    mk("oproj_kernel", gen_k3, 256, 256, stamps=stamps)
    mk("mixer_kernel", gen_k4, 256, 1024, stamps=stamps)
    out = "\n".join(launches) + '\n.amdgcn_target "amdgcn-amd-amdhsa--gfx950"\n.text\n' + "".join(parts)
    out += '.section .rodata,"a"\n' + "".join(kds)
    open(fn, "w").write(out)

if __name__ == "__main__":
    build("v1_sep.s", fused_q=False)
    build("v1_fq.s", fused_q=True)
    build("v1_sep_st.s", fused_q=False, stamps=True)
    build("v1_fq_st.s", fused_q=True, stamps=True)
```

```python
import sys
from asmlib import *
from gen import allreduce, rne1, rne2, unpack, ln_stats, ln_pair, kernel_head, kd, transp_mfma, LOG2E, SCALE, KN
WS_EP = 0x0; WS_XG = 0x400; WS_QG = 0x10000; WS_OP = 0x40000; WS_ML = 0xC0000; WS_YP = 0xD0000
WS_STAMP = 0x10000000
SPIN_MAX = 400000

def gen_fused(a, name, kvpol="nt", stamps=False, first=4, prio=True, wopol="nt", qpol="nt", ps2=0, ps3=0, local=True, ldsround=7, loopbar=True, tailround=-1, noq=0, notail=False, stop=False, blockmap=False, kfirst=False, tailpart=3):
    vK0, vK1, vV0, vV1 = 1, 2, 3, 4
    m, negm, l, alR, mnew, al, tm = 5, 6, 7, 8, 9, 10, 11
    S = 12; P = 20; C4 = 24; Q = 28; O = 44; T = 76
    DA = 108
    KA, VA, KB, VB = 112, 144, 176, 208
    M = 240
    WO = M; W1, B1, W2 = M+8, M+10, M+12; XR = M+14; DUM = M+15
    LDS_XN = 0; LDS_Q = 1024; LDS_FL = 2048; LDS_ML = 2304
    LDS_C = 2560; LDS_R2 = LDS_C + 2048; LDS_FR = LDS_R2 + 1024; LDS_H = LDS_FR + 256
    LDS_OM = LDS_H + 2048; LDS_R1 = LDS_OM + 16384; LDS_D = LDS_R1 + 8192; LDS_END = LDS_D + 7*16384
    assert LDS_OM % 256 == 0 and LDS_R1 // 256 + 28 < 256 and LDS_R2 % 256 == 0
    nst = [0]
    def stamp():
        if stamps:
            a(f"s_memrealtime s[{64+2*nst[0]}:{65+2*nst[0]}]"); nst[0] += 1
    def tail_loads():
        t0, t1, t2 = C4, C4+1, C4+2
        if notail: return
        a("s_lshl_b32 s29, s20, 19"); a("s_and_b32 s30, s21, 1"); a("s_lshl_b32 s30, s30, 18"); a("s_add_u32 s29, s29, s30")
        a("s_lshl_b32 s30, s3, 10"); a("s_add_u32 s29, s29, s30"); a("s_lshr_b32 s30, s21, 1"); a("s_lshl_b32 s30, s30, 6"); a("s_add_u32 s29, s29, s30")
        a(f"v_lshrrev_b32 {v(t0)}, 2, v0"); a(f"v_lshlrev_b32 {v(t0)}, 13, {v(t0)}"); a(f"v_and_b32 {v(t1)}, 3, v0")
        a(f"v_lshl_add_u32 {v(t0)}, {v(t1)}, 4, {v(t0)}"); a(f"v_add_u32 {v(t0)}, s29, {v(t0)}"); a(f"v_add_u32 {v(t1)}, 0x20000, {v(t0)}")
        a("s_waitcnt lgkmcnt(0)")
        if tailpart & 1:
            a(f"global_load_dwordx4 {v(WO,4)}, {v(t0)}, s[48:49] {wopol}"); a(f"global_load_dwordx4 {v(WO+4,4)}, {v(t1)}, s[48:49] {wopol}")
        if not tailpart & 2: return
        a("s_lshl_b32 s29, s3, 8"); a(f"v_lshl_add_u32 {v(t0)}, v0, 2, s29")
        a(f"v_add_u32 {v(t1)}, 2048, {v(t0)}"); a(f"v_min_u32 {v(t1)}, {895*4}, {v(t1)}")
        a(f"v_lshrrev_b32 {v(t2)}, 1, {v(t0)}")
        for (r, sp) in ((W1, "s[52:53]"), (B1, "s[54:55]"), (W2, "s[56:57]")):
            a(f"global_load_dword {v(r)}, {v(t0)}, {sp}"); a(f"global_load_dword {v(r+1)}, {v(t1)}, {sp}")
        a(f"global_load_ushort {v(XR)}, {v(t2)}, s[36:37]")
        a(f"global_load_ushort {v(DUM)}, {v(t2)}, s[50:51]")
    def init_state():
        a(f"v_mov_b32 {v(m)}, 0xff800000"); a(f"v_mov_b32 {v(l)}, 0"); a(f"v_mov_b32 {v(negm)}, 0")
        for i in range(32): a(f"v_mov_b32 {v(O+i)}, 0")
        a(f"v_bfe_u32 {v(tm)}, v0, 2, 2"); a(f"v_lshrrev_b32 {v(al)}, 4, v0")
        a(f"v_lshlrev_b32 {v(tm)}, 8, {v(tm)}"); a(f"v_lshl_add_u32 {v(tm)}, {v(al)}, 4, {v(tm)}")
        a("s_waitcnt lgkmcnt(0)")
        a("s_load_dword s60, s[58:59], 0")
        a("s_add_u32 s61, s61, 0x9e3779b9")
    def late_setup():
        a("s_load_dwordx2 s[48:49], s[0:1], 32")
        a("s_load_dwordx8 s[52:59], s[0:1], 48")
        a("s_load_dwordx2 s[50:51], s[0:1], 80")
        a(f"s_load_dword s61, s[46:47], {WS_EP}")
        a("s_mov_b32 s25, 0x05040100"); a("s_mov_b32 s26, 0x07060302")
        a(f"s_mov_b32 s27, {f32hex(LOG2E)}"); a(f"s_mov_b32 s28, {f32hex(SCALE)}")
    def kv_setup():
        a("s_lshl_b32 s29, s3, 13")
        if blockmap:
            a("s_mul_i32 s29, s3, 0x12000"); a("s_sub_u32 s29, s29, 0x10000"); a("s_max_i32 s29, s29, 0")
        a(f"v_and_b32 {v(vK0)}, 3, v0"); a(f"v_lshlrev_b32 {v(vK0)}, 10, {v(vK0)}")
        a(f"v_bfe_u32 {v(tm)}, v0, 2, 2"); a(f"v_lshl_add_u32 {v(vK0)}, {v(tm)}, 8, {v(vK0)}")
        a(f"v_lshrrev_b32 {v(tm)}, 4, v0"); a(f"v_lshl_add_u32 {v(vK0)}, {v(tm)}, 4, {v(vK0)}")
        a(f"v_add_u32 {v(vK0)}, s29, {v(vK0)}"); a(f"v_add_u32 {v(vK1)}, 0x1000, {v(vK0)}")
        a(f"v_lshlrev_b32 {v(vV0)}, 4, v0"); a(f"v_add_u32 {v(vV0)}, s29, {v(vV0)}"); a(f"v_add_u32 {v(vV1)}, 0x1000, {v(vV0)}")
        a("s_lshl_b32 s29, s20, 24"); a("s_lshl_b32 s30, s21, 19"); a("s_add_u32 s29, s29, s30")
        a("s_mov_b32 s10, 0x80000"); a("s_mov_b32 s11, 0x20000"); a("s_mov_b32 s14, 0x80000"); a("s_mov_b32 s15, 0x20000")
        a("s_waitcnt lgkmcnt(0)")
        a("s_add_u32 s8, s38, s29"); a("s_addc_u32 s9, s39, 0")
        a("s_add_u32 s12, s40, s29"); a("s_addc_u32 s13, s41, 0")
    def fold8(A):
        for c in range(4): a(f"v_permlane32_swap_b32 {v(A+c)}, {v(A+c+4)}")
        for c in range(4): a(f"v_add_f32 {v(A+c)}, {v(A+c)}, {v(A+c+4)}")
        for c in range(2): a(f"v_permlane16_swap_b32 {v(A+c)}, {v(A+c+2)}")
        for c in range(2): a(f"v_add_f32 {v(A+c)}, {v(A+c)}, {v(A+c+2)}")
        for rr in (8, 4):
            for c in range(2): a(f"v_add_f32_dpp {v(A+c)}, {v(A+c)}, {v(A+c)} row_ror:{rr} {DPPM}")
    kernel_head(a, name)
    a("s_cmp_ge_u32 s2, 256"); a(f"s_cbranch_scc1 {name}_end")
    stamp()
    a("s_load_dwordx8 s[36:43], s[0:1], 0")
    a("s_load_dwordx2 s[46:47], s[0:1], 96")
    a("v_lshrrev_b32 v1, 6, v0")
    a("v_readfirstlane_b32 s3, v1")
    a("v_and_b32 v0, 63, v0")
    a("s_and_b32 s20, s2, 7"); a("s_lshr_b32 s21, s2, 3")
    a("s_cmp_eq_u32 s3, 0"); a(f"s_cbranch_scc1 {name}_w0")
    a(f"s_mov_b32 s22, {0x2000 if blockmap else 0xe000}")
    kv_setup()
    cnt = [0]
    def hook():
        cnt[0] += 1
        if cnt[0] == first + 1:
            late_setup()
            a("s_barrier")
    VQ = []
    def wait_for(lab):
        if lab not in VQ: return
        idx = max(i for i, x in enumerate(VQ) if x == lab)
        n = len(VQ) - 1 - idx
        a(f"s_waitcnt vmcnt({min(n, 63)})")
        del VQ[:idx+1]
    def dmaK(lab):
        for j in range(8):
            a(f"s_add_u32 m0, s24, {j*1024 - (j&3)*64}")
            a(f"buffer_load_dwordx4 {v(vK0 if j < 4 else vK1)}, s[8:11], 0 offen offset:{(j&3)*64} {kvpol} lds"); VQ.append(lab)
        a(f"v_add_u32 {v(vK0)}, s22, {v(vK0)}"); a(f"v_add_u32 {v(vK1)}, s22, {v(vK1)}")
    def dmaV(lab):
        for j in range(8):
            if (j & 3) == 0: a(f"s_add_u32 m0, s24, {8192 + (j>>2)*4096}")
            a(f"buffer_load_dwordx4 {v(vV0 if j < 4 else vV1)}, s[12:15], 0 offen offset:{(j&3)*1024} {kvpol} lds"); VQ.append(lab)
        a(f"v_add_u32 {v(vV0)}, s22, {v(vV0)}"); a(f"v_add_u32 {v(vV1)}, s22, {v(vV1)}")
    def loadK(K, pc=False, lab="x"):
        for j in range(8):
            if pc: hook()
            VQ.append(lab)
            a(f"buffer_load_dwordx4 {v(K+4*j,4)}, {v(vK0 if j < 4 else vK1)}, s[8:11], 0 offen offset:{(j&3)*64} {kvpol}")
        a(f"v_add_u32 {v(vK0)}, s22, {v(vK0)}"); a(f"v_add_u32 {v(vK1)}, s22, {v(vK1)}")
    def loadV(V, pc=False, lab="x"):
        for j in range(8):
            if pc: hook()
            VQ.append(lab)
            a(f"buffer_load_dwordx4 {v(V+4*j,4)}, {v(vV0 if j < 4 else vV1)}, s[12:15], 0 offen offset:{(j&3)*1024} {kvpol}")
        a(f"v_add_u32 {v(vV0)}, s22, {v(vV0)}"); a(f"v_add_u32 {v(vV1)}, s22, {v(vV1)}")
    if stamps:
        a("s_mov_b64 s[66:67], 0"); a("s_mov_b64 s[68:69], 0")
    nst_save = nst[0]; nst[0] += 2
    loadK(KA, True, "K0"); loadV(VA, True, "V0"); loadK(KB, True, "K1"); loadV(VB, True, "V1")
    a("s_lshl_b32 s24, s3, 14"); a(f"s_add_u32 s24, s24, {LDS_D - 16384}")
    if ldsround < 9:
        dmaK(f"K{ldsround}"); dmaV(f"V{ldsround}")
    if tailround < 0:
        tail_loads(); VQ.extend(["t"] * (0 if notail else (2 if tailpart & 1 else 0) + (8 if tailpart & 2 else 0)))
    init_state()
    a("s_barrier")
    a.label(f"{name}_join")
    for t in range(4): a(f"ds_read_b128 {v(Q+4*t,4)}, {v(tm)} offset:{LDS_Q+64*t}")
    a(f"v_mov_b32 {v(al)}, 0")
    a(f"ds_read_b32 {v(al)}, {v(al)} offset:{LDS_FL}")
    a("s_waitcnt lgkmcnt(0)")
    a(f"v_readfirstlane_b32 s62, {v(al)}")
    a("s_lshl_b32 s60, s60, 16")
    stamp()
    a("s_cmp_eq_u32 s3, 0"); a(f"s_cbranch_scc1 {name}_w0wait")
    a(f"v_lshl_add_u32 {v(DA)}, v0, 4, s24")
    NR = 9
    def tile(r):
        K, V = (KA, VA) if r % 2 == 0 else (KB, VB)
        nxt = r + 2
        fromlds = r == ldsround
        if r == NR - 1:
            a.fence(); a.label(f"{name}_last")
        if fromlds: a("s_waitcnt lgkmcnt(0)")
        else: wait_for(f"K{r}")
        for t in range(4):
            for g in range(2):
                c = "0" if t == 0 else v(S+4*g, 4)
                a(f"v_mfma_f32_16x16x32_bf16 {v(S+4*g,4)}, {v(K+16*g+4*t,4)}, {v(Q+4*t,4)}, {c}")
        if nxt == ldsround:
            wait_for(f"K{nxt}")
            for j in range(8): a(f"ds_read_b128 {v(K+4*j,4)}, {v(DA)} offset:{1024*j}")
        elif nxt < NR: loadK(K, lab=f"K{nxt}")
        for i in range(4): a(f"v_cvt_pk_bf16_f32 {v(C4+i)}, {v(S+2*i)}, {v(S+2*i+1)}")
        for i in range(4): unpack(a, S+2*i, S+2*i+1, C4+i)
        for i in range(8): a(f"v_mul_f32 {v(S+i)}, s28, {v(S+i)}")
        for i in range(4): a(f"v_cvt_pk_bf16_f32 {v(C4+i)}, {v(S+2*i)}, {v(S+2*i+1)}")
        for i in range(4): unpack(a, S+2*i, S+2*i+1, C4+i)
        a(f"v_max3_f32 {v(mnew)}, {v(m)}, {v(S)}, {v(S+1)}")
        for i in range(1, 4): a(f"v_max3_f32 {v(mnew)}, {v(mnew)}, {v(S+2*i)}, {v(S+2*i+1)}")
        a(f"v_cmp_gt_f32 vcc, {v(mnew)}, {v(m)}")
        a(f"s_cbranch_vccz {name}_skip{r}")
        a(f"v_mov_b32 {v(tm)}, {v(mnew)}"); a(f"v_permlane16_swap_b32 {v(mnew)}, {v(tm)}"); a(f"v_max_f32 {v(mnew)}, {v(mnew)}, {v(tm)}")
        a(f"v_mov_b32 {v(tm)}, {v(mnew)}"); a(f"v_permlane32_swap_b32 {v(mnew)}, {v(tm)}"); a(f"v_max_f32 {v(mnew)}, {v(mnew)}, {v(tm)}")
        a(f"v_sub_f32 {v(al)}, {v(m)}, {v(mnew)}"); a(f"v_mul_f32 {v(al)}, s27, {v(al)}"); a(f"v_exp_f32 {v(al)}, {v(al)}")
        a(f"v_mov_b32 {v(m)}, {v(mnew)}")
        a(f"v_mul_f32_e64 {v(negm)}, -{v(mnew)}, s27")
        a(f"v_mul_f32 {v(l)}, {v(l)}, {v(al)}")
        for rr in range(4): a(f"v_mov_b32_dpp {v(alR)}, {v(al)} row_newbcast:{4*rr} row_mask:{hex(1<<rr)} bank_mask:0xf")
        for e in range(8): a(f"v_mul_f32 {v(O+4*e)}, {v(alR)}, {v(O+4*e)}")
        a.label(f"{name}_skip{r}")
        for i in range(8): a(f"v_fma_f32 {v(S+i)}, {v(S+i)}, s27, {v(negm)}")
        for i in range(8): a(f"v_exp_f32 {v(S+i)}, {v(S+i)}")
        for i in range(4): a(f"v_cvt_pk_bf16_f32 {v(P+i)}, {v(S+2*i)}, {v(S+2*i+1)}")
        for i in range(4): a(f"v_add_f32 {v(C4+i)}, {v(S+2*i)}, {v(S+2*i+1)}")
        a(f"v_add_f32 {v(C4)}, {v(C4)}, {v(C4+1)}"); a(f"v_add_f32 {v(C4+2)}, {v(C4+2)}, {v(C4+3)}")
        a(f"v_add_f32 {v(C4)}, {v(C4)}, {v(C4+2)}"); a(f"v_add_f32 {v(l)}, {v(l)}, {v(C4)}")
        if not fromlds: wait_for(f"V{r}")
        def pre():
            if nxt == ldsround:
                wait_for(f"V{nxt}")
                for j in range(8): a(f"ds_read_b128 {v(V+4*j,4)}, {v(DA)} offset:{8192+1024*j}")
            elif nxt < NR: loadV(V, lab=f"V{nxt}")
        transp_mfma(a, V, T, P, O, 25, 26, between=pre)
        if r == tailround:
            tail_loads(); VQ.extend(["t"] * (0 if notail else (2 if tailpart & 1 else 0) + (8 if tailpart & 2 else 0)))
        if r < NR - 1 and loopbar: a("s_barrier")
    for r in range(NR): tile(r)
    stamp()
    t0, t1, t2, t3 = C4, C4+1, C4+2, C4+3
    if stop:
        for i in range(5): stamp()
        a(f"s_branch {name}_fin2")
        nst[0] -= 5
    a(f"v_mov_b32 {v(tm)}, {v(l)}"); a(f"v_permlane16_swap_b32 {v(l)}, {v(tm)}"); a(f"v_add_f32 {v(l)}, {v(l)}, {v(tm)}")
    a("s_lshl_b32 s29, s3, 11")
    a(f"v_lshl_add_u32 {v(t0)}, v0, 2, s29")
    a(f"v_mov_b32 {v(tm)}, {v(l)}"); a(f"v_permlane32_swap_b32 {v(l)}, {v(tm)}"); a(f"v_add_f32 {v(S+1)}, {v(l)}, {v(tm)}")
    a("s_lshl_b32 s29, s3, 3")
    a(f"v_lshl_add_u32 {v(al)}, v0, 4, s29")
    a(f"v_mul_f32 {v(S)}, s27, {v(m)}")
    a("s_mov_b64 exec, 0x1111")
    a(f"ds_write_b64 {v(al)}, {v(S,2)} offset:{LDS_ML}")
    a("s_mov_b64 exec, -1")
    for k in range(4): a(f"ds_write2st64_b32 {v(t0)}, {v(O+8*k)}, {v(O+8*k+4)} offset0:{LDS_OM//256+2*k} offset1:{LDS_OM//256+2*k+1}")
    a(f"v_lshrrev_b32 {v(tm)}, 4, v0"); a(f"v_lshlrev_b32 {v(tm)}, 6, {v(tm)}")
    a("s_lshl_b32 s30, s3, 8")
    a(f"v_lshl_add_u32 {v(al)}, v0, 2, s30")
    a("s_lshl_b32 s30, s20, 16"); a("s_lshl_b32 s34, s21, 10"); a("s_add_u32 s30, s30, s34"); a("s_lshl_b32 s34, s3, 7"); a("s_add_u32 s30, s30, s34")
    a(f"s_add_u32 s30, s30, {WS_OP}")
    a(f"v_lshrrev_b32 {v(t1)}, 5, v0"); a(f"v_lshlrev_b32 {v(t1)}, 15, {v(t1)}"); a(f"v_and_b32 {v(t2)}, 31, v0")
    a(f"v_lshl_add_u32 {v(t1)}, {v(t2)}, 2, {v(t1)}"); a(f"v_add_u32 {v(t1)}, s30, {v(t1)}")
    a("s_lshl_b32 s30, s20, 10"); a("s_lshl_b32 s34, s21, 3"); a("s_add_u32 s30, s30, s34")
    a(f"s_add_u32 s30, s30, {WS_ML}"); a(f"v_lshl_add_u32 {v(P)}, v0, 4, s30")
    a("s_mov_b32 s6, 0x00010001"); a("s_mov_b32 s7, 0x00010001")
    a("s_waitcnt lgkmcnt(0)")
    a("s_barrier")
    for i in range(4): a(f"ds_read_b128 {v(T+4*i,4)}, {v(tm)} offset:{LDS_ML+16*i}")
    for w in range(0, 8, 2):
        a(f"ds_read2st64_b32 {v(T+16+w,2)}, {v(al)} offset0:{LDS_OM//256 + 8*w} offset1:{LDS_OM//256 + 8*(w+1)}")
    ML = VA; OO = KB; ACC = VA + 8; CW = VA + 16; vx = VA + 4; U = VA + 24
    aML = KA; aO = KA + 1
    a("s_and_b32 s33, s21, 1")
    a("s_lshl_b32 s29, s20, 10"); a("s_lshl_b32 s30, s33, 9"); a("s_add_u32 s29, s29, s30"); a(f"s_add_u32 s29, s29, {WS_ML}")
    a(f"v_lshl_add_u32 {v(aML)}, {v(t2)}, 4, s29")
    a("s_lshl_b32 s29, s20, 16"); a("s_lshl_b32 s30, s33, 15"); a("s_add_u32 s29, s29, s30"); a("s_lshl_b32 s30, s3, 12"); a("s_add_u32 s29, s29, s30")
    a(f"s_add_u32 s29, s29, {WS_OP}")
    a(f"v_lshl_add_u32 {v(aO)}, v0, 4, s29")
    a("s_waitcnt lgkmcnt(4)")
    Mx = S
    a(f"v_max3_f32 {v(Mx)}, {v(T)}, {v(T+2)}, {v(T+4)}"); a(f"v_max3_f32 {v(t0)}, {v(T+6)}, {v(T+8)}, {v(T+10)}")
    a(f"v_max3_f32 {v(Mx)}, {v(Mx)}, {v(T+12)}, {v(T+14)}"); a(f"v_max_f32 {v(Mx)}, {v(Mx)}, {v(t0)}")
    for w in range(8): a(f"v_sub_f32 {v(T+2*w)}, {v(T+2*w)}, {v(Mx)}")
    for w in range(8): a(f"v_exp_f32 {v(T+2*w)}, {v(T+2*w)}")
    a("s_waitcnt lgkmcnt(0)")
    a(f"v_mul_f32 {v(S+2)}, {v(T)}, {v(T+16)}"); a(f"v_mul_f32 {v(S+3)}, {v(T+2)}, {v(T+17)}")
    for w in range(2, 8): a(f"v_fmac_f32 {v(S+2+(w&1))}, {v(T+2*w)}, {v(T+16+w)}")
    a(f"v_add_f32 {v(S+2)}, {v(S+2)}, {v(S+3)}")
    a(f"v_min_u32 {v(S+2)}, -2, {v(S+2)}")
    def dual_store(txt, lab):
        if local:
            a("s_cmp_eq_u32 s62, 1"); a(f"s_cbranch_scc1 {name}_{lab}a")
            a(txt + " sc1"); a(f"s_branch {name}_{lab}b")
            a.label(f"{name}_{lab}a"); a(txt); a.label(f"{name}_{lab}b")
        else: a(txt + " sc1")
    dual_store(f"global_store_dword {v(t1)}, {v(S+2)}, s[46:47]", "so")
    a("s_cmp_lg_u32 s3, 0"); a(f"s_cbranch_scc1 {name}_noml")
    a(f"v_mul_f32 {v(S+1)}, {v(T)}, {v(T+1)}"); a(f"v_mul_f32 {v(S+3)}, {v(T+2)}, {v(T+3)}")
    for w in range(2, 8): a(f"v_fmac_f32 {v(S+1+2*(w&1))}, {v(T+2*w)}, {v(T+2*w+1)}")
    a(f"v_add_f32 {v(S+1)}, {v(S+1)}, {v(S+3)}")
    a(f"v_min_u32 {v(S)}, -2, {v(Mx)}"); a(f"v_min_u32 {v(S+1)}, -2, {v(S+1)}")
    a("s_mov_b64 exec, s[6:7]")
    dual_store(f"global_store_dwordx2 {v(P)}, {v(S,2)}, s[46:47]", "sm")
    a("s_mov_b64 exec, -1")
    a.label(f"{name}_noml")
    stamp()
    a("s_mov_b32 s30, 0"); a("s_mov_b32 s31, 0")
    WU = VB
    for c in range(8): unpack(a, WU+2*c, WU+2*c+1, WO+c)
    a(f"s_lshl_b32 s29, s3, 8"); a(f"v_lshl_add_u32 {v(t1)}, {v(t2)}, 3, s29")
    a(f"v_bfe_u32 {v(t3)}, v0, 2, 1"); a("s_lshl_b32 s34, s3, 4"); a("s_add_u32 s29, s29, s34"); a(f"v_lshl_add_u32 {v(t3)}, {v(t3)}, 7, s29")
    a.label(f"{name}_p2")
    a(f"global_load_dwordx4 {v(ML,4)}, {v(aML)}, s[46:47] sc1")
    a("s_cmp_eq_u32 s31, 1"); a(f"s_cbranch_scc1 {name}_p2m")
    for i in range(4):
        a(f"global_load_dwordx4 {v(OO+4*i,4)}, {v(aO)}, s[46:47] offset:{1024*i} sc1")
    a("s_waitcnt vmcnt(0)")
    a(f"v_max3_u32 {v(vx)}, {v(OO)}, {v(OO+1)}, {v(OO+2)}"); a(f"v_max3_u32 {v(vx+1)}, {v(OO+3)}, {v(OO+4)}, {v(OO+5)}")
    for i in range(6, 14, 4):
        a(f"v_max3_u32 {v(vx)}, {v(vx)}, {v(OO+i)}, {v(OO+i+1)}"); a(f"v_max3_u32 {v(vx+1)}, {v(vx+1)}, {v(OO+i+2)}, {v(OO+i+3)}")
    a(f"v_max3_u32 {v(vx)}, {v(vx)}, {v(OO+14)}, {v(OO+15)}"); a(f"v_max_u32 {v(vx)}, {v(vx)}, {v(vx+1)}")
    a(f"v_cmp_eq_u32 vcc, -1, {v(vx)}")
    a("s_cmp_eq_u64 vcc, 0"); a("s_cselect_b32 s31, 1, 0")
    a.label(f"{name}_p2m")
    a("s_add_u32 s30, s30, 1")
    a("s_waitcnt vmcnt(0)")
    a(f"v_max3_u32 {v(vx)}, {v(ML)}, {v(ML+1)}, {v(ML+2)}"); a(f"v_max_u32 {v(vx)}, {v(vx)}, {v(ML+3)}")
    a(f"v_cmp_eq_u32 vcc, -1, {v(vx)}")
    a(f"s_cmp_gt_u32 s30, {SPIN_MAX}"); a(f"s_cbranch_scc1 {name}_p2d")
    a(f"s_cbranch_vccnz {name}_p2s")
    a("s_cmp_eq_u32 s31, 1"); a(f"s_cbranch_scc1 {name}_p2d")
    a.label(f"{name}_p2s")
    if ps2: a(f"s_sleep {ps2}")
    a(f"s_branch {name}_p2")
    a.label(f"{name}_p2d")
    stamp()
    a(f"v_max_f32 {v(t0)}, {v(ML)}, {v(ML+2)}")
    allreduce(a, "v_max_f32", t0, tm, lanes=16)
    a(f"v_sub_f32 {v(vx)}, {v(ML)}, {v(t0)}"); a(f"v_sub_f32 {v(vx+1)}, {v(ML+2)}, {v(t0)}")
    a(f"v_exp_f32 {v(vx)}, {v(vx)}"); a(f"v_exp_f32 {v(vx+1)}, {v(vx+1)}")
    a(f"ds_write_b64 {v(t1)}, {v(vx,2)} offset:{LDS_C}")
    a(f"v_mul_f32 {v(t0)}, {v(vx)}, {v(ML+1)}"); a(f"v_fmac_f32 {v(t0)}, {v(vx+1)}, {v(ML+3)}")
    a("s_waitcnt lgkmcnt(0)")
    a(f"ds_read_b128 {v(CW,4)}, {v(t3)} offset:{LDS_C}")
    allreduce(a, "v_add_f32", t0, tm, lanes=16)
    a(f"v_rcp_f32 {v(t0)}, {v(t0)}")
    a("s_lshl_b32 s34, s3, 10"); a(f"v_lshl_add_u32 {v(t1)}, v0, 4, s34")
    a(f"v_lshrrev_b32 {v(t3)}, 2, v0"); a("s_lshl_b32 s34, s3, 7"); a(f"v_lshl_add_u32 {v(t3)}, {v(t3)}, 2, s34")
    a(f"v_readlane_b32 s4, {v(t0)}, 0"); a(f"v_readlane_b32 s5, {v(t0)}, 16")
    a("s_waitcnt lgkmcnt(0)")
    for k in range(4):
        for c in range(4):
            op = "v_mul_f32" if k == 0 else "v_fmac_f32"
            a(f"{op} {v(ACC+c)}, {v(CW+k)}, {v(OO+4*k+c)}")
    a(f"ds_write_b128 {v(t1)}, {v(ACC,4)} offset:{LDS_R1}")
    a(f"v_add_u32 {v(t0)}, 64, {v(t3)}")
    a(f"v_and_b32 {v(t1)}, 3, v0"); a(f"v_lshrrev_b32 {v(tm)}, 4, v0"); a(f"v_lshlrev_b32 {v(t1)}, 5, {v(t1)}"); a(f"v_lshl_add_u32 {v(t1)}, {v(tm)}, 3, {v(t1)}")
    a(f"v_add_u32 {v(t1)}, s34, {v(t1)}")
    a("s_waitcnt lgkmcnt(0)"); a("s_barrier")
    b0 = LDS_R1 // 256
    for k in range(4): a(f"ds_read2st64_b32 {v(U+2*k,2)}, {v(t3)} offset0:{b0+8*k} offset1:{b0+8*k+4}")
    for k in range(4): a(f"ds_read2st64_b32 {v(U+8+2*k,2)}, {v(t0)} offset0:{b0+8*k} offset1:{b0+8*k+4}")
    a(f"v_lshlrev_b32 {v(t2)}, 2, v0")
    a("s_lshl_b32 s29, s20, 12"); a("s_lshl_b32 s30, s33, 11"); a("s_add_u32 s29, s29, s30"); a("s_lshr_b32 s30, s21, 1"); a("s_lshl_b32 s30, s30, 7")
    a("s_add_u32 s29, s29, s30"); a(f"s_add_u32 s29, s29, {WS_YP}")
    a(f"v_add_u32 {v(t3)}, s29, {v(t2)}")
    a("s_mov_b32 s6, 0x000f000f"); a("s_mov_b32 s7, 0x000f000f")
    a("s_waitcnt lgkmcnt(4)")
    for k in range(4): a(f"v_add_f32 {v(U+2*k)}, {v(U+2*k)}, {v(U+2*k+1)}")
    a(f"v_add_f32 {v(U)}, {v(U)}, {v(U+2)}"); a(f"v_add_f32 {v(U+4)}, {v(U+4)}, {v(U+6)}")
    a("s_waitcnt lgkmcnt(0)")
    for k in range(4): a(f"v_add_f32 {v(U+8+2*k)}, {v(U+8+2*k)}, {v(U+8+2*k+1)}")
    a(f"v_add_f32 {v(U+8)}, {v(U+8)}, {v(U+10)}"); a(f"v_add_f32 {v(U+12)}, {v(U+12)}, {v(U+14)}")
    a(f"v_add_f32 {v(U)}, {v(U)}, {v(U+4)}"); a(f"v_add_f32 {v(U+1)}, {v(U+8)}, {v(U+12)}")
    a(f"v_mul_f32 {v(U)}, s4, {v(U)}"); a(f"v_mul_f32 {v(U+1)}, s5, {v(U+1)}")
    rne2(a, U, U+1, U, U+1, t0)
    for c in range(8): a(f"v_mul_f32 {v(WU+c)}, {v(U)}, {v(WU+c)}")
    for c in range(8): a(f"v_fmac_f32 {v(WU+c)}, {v(U+1)}, {v(WU+8+c)}")
    fold8(WU)
    a("s_mov_b64 exec, s[6:7]")
    a(f"ds_write_b64 {v(t1)}, {v(WU,2)} offset:{LDS_R2}")
    a("s_mov_b64 exec, -1")
    a("s_waitcnt lgkmcnt(0)"); a("s_barrier")
    a("s_cmp_lg_u32 s3, 0"); a(f"s_cbranch_scc1 {name}_s3")
    a(f"ds_read2st64_b32 {v(U,2)}, {v(t2)} offset0:{LDS_R2//256} offset1:{LDS_R2//256+1}")
    a(f"ds_read2st64_b32 {v(U+2,2)}, {v(t2)} offset0:{LDS_R2//256+2} offset1:{LDS_R2//256+3}")
    a("s_waitcnt lgkmcnt(0)")
    a(f"v_add_f32 {v(U)}, {v(U)}, {v(U+1)}"); a(f"v_add_f32 {v(U+2)}, {v(U+2)}, {v(U+3)}"); a(f"v_add_f32 {v(U)}, {v(U)}, {v(U+2)}")
    a(f"v_mov_b32 {v(tm)}, {v(U)}"); a(f"v_permlane32_swap_b32 {v(U)}, {v(tm)}"); a(f"v_add_f32 {v(U)}, {v(U)}, {v(tm)}")
    a(f"v_min_u32 {v(U)}, -2, {v(U)}")
    a("s_mov_b32 exec_hi, 0")
    a(f"global_store_dword {v(t3)}, {v(U)}, s[46:47] sc1")
    a("s_mov_b64 exec, -1")
    a.fence()
    a.label(f"{name}_s3")
    stamp()
    Y = KA; AY = KB
    for i in range(8): a(f"v_add_u32 {v(AY+i)}, {WS_YP + 0x1000*i}, {v(al)}")
    wa = [VA+i for i in range(12)]
    for k in range(2):
        unpack(a, wa[6*k], wa[6*k+1], W1+k); unpack(a, wa[6*k+2], wa[6*k+3], B1+k); unpack(a, wa[6*k+4], wa[6*k+5], W2+k)
    a("s_cmp_lt_u32 s3, 6"); a(f"s_cbranch_scc1 {name}_w2ok")
    a(f"v_mov_b32 {v(wa[10])}, 0"); a(f"v_mov_b32 {v(wa[11])}, 0")
    a.label(f"{name}_w2ok")
    a(f"v_lshlrev_b32 {v(XR)}, 16, {v(XR)}")
    a("s_mov_b32 s30, 0"); a("s_mov_b32 s31, 0")
    vx = KA + 16
    a.label(f"{name}_p3")
    for i in range(8):
        a(f"s_bitcmp1_b32 s31, {i}"); a(f"s_cbranch_scc1 {name}_p3k{i}")
        a(f"global_load_dword {v(Y+2*i)}, {v(AY+i)}, s[46:47] sc1")
        a(f"global_load_dword {v(Y+2*i+1)}, {v(AY+i)}, s[46:47] offset:2048 sc1")
        a.label(f"{name}_p3k{i}")
    a("s_add_u32 s30, s30, 1")
    a("s_waitcnt vmcnt(0)")
    for i in range(8): a(f"v_max_u32 {v(vx+i)}, {v(Y+2*i)}, {v(Y+2*i+1)}")
    a(f"v_max3_u32 {v(vx+8)}, {v(vx)}, {v(vx+1)}, {v(vx+2)}"); a(f"v_max3_u32 {v(vx+9)}, {v(vx+3)}, {v(vx+4)}, {v(vx+5)}")
    a(f"v_max3_u32 {v(vx+8)}, {v(vx+8)}, {v(vx+6)}, {v(vx+7)}"); a(f"v_max_u32 {v(vx+8)}, {v(vx+8)}, {v(vx+9)}")
    a(f"v_cmp_eq_u32 vcc, -1, {v(vx+8)}")
    a(f"s_cbranch_vccz {name}_p3d")
    a(f"s_cmp_gt_u32 s30, {SPIN_MAX}"); a(f"s_cbranch_scc1 {name}_p3d")
    for i in range(8):
        a(f"v_cmp_eq_u32 vcc, -1, {v(vx+i)}")
        a("s_cmp_eq_u64 vcc, 0"); a(f"s_cselect_b32 s34, {1<<i}, 0"); a("s_or_b32 s31, s31, s34")
    if ps3: a(f"s_sleep {ps3}")
    a(f"s_branch {name}_p3")
    a.label(f"{name}_p3d")
    stamp()
    for k in range(8): a(f"v_add_f32 {v(Y+2*k)}, {v(Y+2*k)}, {v(Y+2*k+1)}")
    for k in range(4): a(f"v_add_f32 {v(Y+4*k)}, {v(Y+4*k)}, {v(Y+4*k+2)}")
    a(f"v_add_f32 {v(Y)}, {v(Y)}, {v(Y+4)}"); a(f"v_add_f32 {v(Y+8)}, {v(Y+8)}, {v(Y+12)}"); a(f"v_add_f32 {v(Y)}, {v(Y)}, {v(Y+8)}")
    rne1(a, Y, Y, t1)
    a(f"v_add_f32 {v(Y)}, {v(Y)}, {v(XR)}")
    rne1(a, Y, Y, t1)
    a(f"ds_write_b32 {v(al)}, {v(Y)} offset:{LDS_H}")
    a(f"v_lshlrev_b32 {v(t2)}, 4, v0")
    a("s_lshl_b32 s29, s2, 3"); a(f"v_mov_b32 {v(t1)}, s29")
    Y = VB
    X = [Y+8+i for i in range(8)]; mb, sq, rc = Y+16, Y+17, Y+18; PK = Y+20; HP = Y+24; HH = Y+26
    a("s_waitcnt lgkmcnt(0)"); a("s_barrier")
    a(f"ds_read_b128 {v(X[0],4)}, {v(t2)} offset:{LDS_H}"); a(f"ds_read_b128 {v(X[4],4)}, {v(t2)} offset:{LDS_H+1024}")
    a(f"ds_read_b64 {v(HH,2)}, {v(t1)} offset:{LDS_H}")
    a("s_waitcnt lgkmcnt(0)")
    ln_stats(a, X, mb, sq, rc, t0, t1, t2)
    for i in range(4):
        ln_pair(a, X[2*i], X[2*i+1], mb, sq, rc, PK+i, t0, t1, t2, t3)
        unpack(a, X[2*i], X[2*i+1], PK+i)
    ln_pair(a, HH, HH+1, mb, sq, rc, PK, t0, t1, t2, t3)
    unpack(a, HP, HP+1, PK)
    ln_stats(a, X, mb, sq, rc, t0, t1, t2)
    ln_pair(a, HP, HP+1, mb, sq, rc, PK, t0, t1, t2, t3)
    H0, H1 = HP, HP+1
    unpack(a, H0, H1, PK)
    c0 = -2.0 * LOG2E * 0.7978845608028654; c1 = c0 * 0.044715
    a(f"s_mov_b32 s4, {f32hex(c0)}"); a(f"s_mov_b32 s5, {f32hex(c1)}")
    a(f"v_mov_b32 {v(t2)}, s4")
    u = [VA+12+i for i in range(8)]; w = [VA+20+i for i in range(8)]; z = [VA+28, VA+29]
    def each(fn):
        for k in range(2):
            for ch in range(2):
                for f in range(2): fn(4*k+2*ch+f, k, ch, f)
    each(lambda i, k, ch, f: a(f"v_mul_f32 {v(u[i])}, {v(H0+ch)}, {v(wa[6*k+f])}"))
    for i in range(4): rne2(a, u[2*i], u[2*i+1], u[2*i], u[2*i+1], w[i])
    each(lambda i, k, ch, f: a(f"v_add_f32 {v(u[i])}, {v(u[i])}, {v(wa[6*k+2+f])}"))
    for i in range(4): rne2(a, u[2*i], u[2*i+1], u[2*i], u[2*i+1], w[i])
    for i in range(8): a(f"v_mul_f32 {v(w[i])}, {v(u[i])}, {v(u[i])}")
    for i in range(8): a(f"v_fma_f32 {v(w[i])}, {v(w[i])}, s5, {v(t2)}")
    for i in range(8): a(f"v_mul_f32 {v(w[i])}, {v(w[i])}, {v(u[i])}")
    for i in range(8): a(f"v_exp_f32 {v(w[i])}, {v(w[i])}")
    for i in range(8): a(f"v_add_f32 {v(w[i])}, 1.0, {v(w[i])}")
    for i in range(8): a(f"v_rcp_f32 {v(w[i])}, {v(w[i])}")
    for i in range(8): a(f"v_mul_f32 {v(u[i])}, {v(u[i])}, {v(w[i])}")
    for i in range(4): rne2(a, u[2*i], u[2*i+1], u[2*i], u[2*i+1], w[i])
    each(lambda i, k, ch, f: a((f"v_mul_f32 {v(z[ch])}, {v(u[i])}, {v(wa[6*k+4+f])}" if (k == 0 and f == 0) else f"v_fmac_f32 {v(z[ch])}, {v(u[i])}, {v(wa[6*k+4+f])}")))
    a(f"v_permlane32_swap_b32 {v(z[0])}, {v(z[1])}"); a(f"v_add_f32 {v(z[0])}, {v(z[0])}, {v(z[1])}")
    allreduce(a, "v_add_f32", z[0], t0, lanes=32)
    a("s_lshl_b32 s29, s3, 2"); a(f"v_add_u32 {v(t0)}, s29, v0")
    a("s_mov_b32 s6, 1"); a("s_mov_b32 s7, 1")
    a(f"v_and_b32 {v(t1)}, 32, v0")
    a("s_mov_b64 exec, s[6:7]")
    a(f"ds_write_b32 {v(t0)}, {v(z[0])} offset:{LDS_FR}")
    a("s_mov_b64 exec, -1")
    a(f"v_cmp_ne_u32 vcc, 0, {v(t1)}")
    a(f"v_cndmask_b32 {v(HH)}, {v(HH)}, {v(HH+1)}, vcc")
    a(f"v_lshrrev_b32 {v(t2)}, 4, {v(t1)}"); a("s_lshl_b32 s29, s2, 2"); a(f"v_add_u32 {v(t2)}, s29, {v(t2)}")
    a("s_waitcnt lgkmcnt(0)"); a("s_barrier")
    a("s_cmp_lg_u32 s3, 0"); a(f"s_cbranch_scc1 {name}_fin")
    a(f"ds_read_b128 {v(u[0],4)}, {v(t1)} offset:{LDS_FR}"); a(f"ds_read_b128 {v(u[4],4)}, {v(t1)} offset:{LDS_FR+16}")
    a(f"v_mov_b32 {v(t0)}, 0"); a(f"v_mov_b32 {v(t1)}, s61")
    a("s_waitcnt lgkmcnt(0)")
    for i in range(4): a(f"v_add_f32 {v(u[i])}, {v(u[i])}, {v(u[4+i])}")
    a(f"v_add_f32 {v(u[0])}, {v(u[0])}, {v(u[1])}"); a(f"v_add_f32 {v(u[2])}, {v(u[2])}, {v(u[3])}"); a(f"v_add_f32 {v(z[0])}, {v(u[0])}, {v(u[2])}")
    rne1(a, z[0], z[0], t3)
    a(f"v_add_f32 {v(z[0])}, s60, {v(z[0])}")
    rne1(a, z[0], z[0], t3)
    a(f"v_add_f32 {v(z[0])}, {v(z[0])}, {v(HH)}")
    a(f"v_cvt_pk_bf16_f32 {v(z[0])}, {v(z[0])}, {v(z[0])}")
    a("s_mov_b64 exec, s[6:7]")
    a(f"global_store_short {v(t2)}, {v(z[0])}, s[50:51]")
    a("s_cmp_lg_u32 s2, 0"); a(f"s_cbranch_scc1 {name}_fin")
    a("s_mov_b64 exec, 1")
    a(f"global_store_dword {v(t0)}, {v(t1)}, s[46:47] offset:{WS_EP}")
    a.label(f"{name}_fin")
    if stamps:
        a("s_mov_b64 exec, 1")
        a("s_waitcnt vmcnt(0)")
        stamp()
        a.label(f"{name}_fin2")
        a("s_mov_b64 exec, 1")
        a("s_waitcnt lgkmcnt(0)")
        assert nst[0] <= 16
        a("s_lshl_b32 s29, s2, 3"); a("s_add_u32 s29, s29, s3"); a("s_lshl_b32 s29, s29, 7"); a(f"s_add_u32 s29, s29, {WS_STAMP}")
        a(f"v_mov_b32 {v(tm)}, s29")
        n = (nst[0] + 1) // 2
        for i in range(4*n): a(f"v_mov_b32 {v(T+i)}, s{64+i}")
        for i in range(n): a(f"global_store_dwordx4 {v(tm)}, {v(T+4*i,4)}, s[46:47] offset:{16*i}")
    a.label(f"{name}_end"); a("s_endpgm")
    a.label(f"{name}_w0")
    nst_end = nst[0]; nst[0] = nst_save
    if prio: a("s_setprio 3")
    W = KB; X = [M+i for i in range(8)]; xr = M + 8; vo = M + 12; mb, sq, rc = M+13, M+14, M+15
    t0, t1, t2, t3 = T, T+1, T+2, T+3
    CL = O
    a(f"v_lshrrev_b32 {v(t0)}, 2, v0"); a(f"v_and_b32 {v(t1)}, 3, v0"); a(f"v_lshlrev_b32 {v(t2)}, 6, {v(t0)}"); a(f"v_lshl_add_u32 {v(t2)}, {v(t1)}, 3, {v(t2)}")
    a(f"v_lshlrev_b32 {v(vo)}, 13, {v(t0)}"); a(f"v_lshl_add_u32 {v(vo)}, {v(t1)}, 4, {v(vo)}")
    a("s_and_b32 s31, s21, 1"); a("s_lshr_b32 s34, s21, 1")
    a("s_lshl_b32 s32, s20, 10"); a("s_lshl_b32 s33, s34, 6"); a("s_add_u32 s32, s32, s33"); a("s_lshl_b32 s33, s31, 21"); a("s_add_u32 s32, s32, s33")
    a("s_mov_b32 s18, 0x400000"); a("s_mov_b32 s19, 0x20000")
    a("s_waitcnt lgkmcnt(0)")
    a(f"global_load_dwordx2 {v(xr,2)}, {v(t2)}, s[36:37]"); a(f"global_load_dwordx2 {v(xr+2,2)}, {v(t2)}, s[36:37] offset:32")
    a("s_mov_b32 s16, s42"); a("s_mov_b32 s17, s43")
    for i in range(16):
        if noq == 2: a(f"buffer_load_dwordx4 {v(W+4*i,4)}, {v(vo)}, s[16:19], s19 offen offset:4000") if False else a(f"global_load_dword {v(W+4*i)}, {v(t2)}, s[36:37]")
        else: a(f"buffer_load_dwordx4 {v(W+4*i,4)}, {v(vo)}, s[16:19], s32 offen {qpol}")
        if i < 15: a("s_add_u32 s32, s32, 0x20000")
    for i in range(4): a(f"v_mov_b32 {v(CL+i)}, -1")
    a("s_lshl_b32 s29, s20, 16"); a("s_lshl_b32 s30, s21, 10"); a("s_add_u32 s29, s29, s30"); a(f"s_add_u32 s29, s29, {WS_OP}")
    a(f"v_lshl_add_u32 {v(CL+4)}, v0, 4, s29"); a(f"v_add_u32 {v(CL+5)}, 0x8000, {v(CL+4)}")
    a("s_lshl_b32 s29, s20, 10"); a("s_lshl_b32 s30, s21, 3"); a("s_add_u32 s29, s29, s30"); a(f"s_add_u32 s29, s29, {WS_ML}")
    a(f"v_lshl_add_u32 {v(CL+6)}, v0, 8, s29")
    a("s_lshl_b32 s29, s20, 12"); a("s_lshl_b32 s30, s31, 11"); a("s_add_u32 s29, s29, s30"); a("s_lshl_b32 s30, s34, 7"); a("s_add_u32 s29, s29, s30")
    a(f"s_add_u32 s29, s29, {WS_YP}")
    a(f"v_lshl_add_u32 {v(CL+7)}, v0, 4, s29")
    a(f"global_store_dwordx4 {v(CL+4)}, {v(CL,4)}, s[46:47] sc1")
    a(f"global_store_dwordx4 {v(CL+5)}, {v(CL,4)}, s[46:47] sc1")
    a("s_mov_b64 exec, 0xf")
    a(f"global_store_dwordx2 {v(CL+6)}, {v(CL,2)}, s[46:47] sc1")
    a("s_mov_b64 exec, 0xff")
    a(f"global_store_dwordx4 {v(CL+7)}, {v(CL,4)}, s[46:47] sc1")
    a("s_mov_b64 exec, -1")
    a("s_mov_b32 s22, 0")
    kv_setup()
    loadK(KA); loadV(VA)
    a("s_barrier")
    late_setup()
    a("s_getreg_b32 s63, hwreg(HW_REG_XCC_ID, 0, 4)")
    a(f"v_lshrrev_b32 {v(t2)}, 3, {v(t0)}"); a(f"v_lshlrev_b32 {v(vo)}, 9, {v(t2)}"); a(f"v_lshl_add_u32 {v(vo)}, {v(t1)}, 7, {v(vo)}")
    a(f"v_and_b32 {v(t2)}, 7, {v(t0)}"); a(f"v_lshl_add_u32 {v(vo)}, {v(t2)}, 2, {v(vo)}")
    RA = CL + 8
    a("s_lshl_b32 s29, s31, 9"); a(f"v_lshl_add_u32 {v(RA)}, {v(t0)}, 5, s29")
    GS = CL + 9
    a(f"v_lshrrev_b32 {v(t2)}, 4, v0"); a(f"v_lshlrev_b32 {v(GS)}, 6, {v(t1)}"); a(f"v_lshl_add_u32 {v(GS)}, {v(t2)}, 4, {v(GS)}")
    a("s_lshl_b32 s29, s20, 13"); a(f"s_add_u32 s29, s29, {WS_QG}"); a("s_lshl_b32 s30, s31, 12"); a("s_add_u32 s30, s30, s29"); a("s_lshl_b32 s33, s34, 8"); a("s_add_u32 s30, s30, s33")
    a(f"v_add_u32 {v(GS)}, s30, {v(GS)}")
    GL = CL + 10
    a(f"v_lshl_add_u32 {v(GL)}, v0, 4, s29"); a(f"v_add_u32 {v(GL+1)}, 0x1000, {v(GL)}")
    a("s_lshl_b32 s30, s20, 8"); a(f"v_and_b32 {v(t2)}, 31, v0"); a(f"v_lshl_add_u32 {v(GL+2)}, {v(t2)}, 3, s30")
    a("s_lshl_b32 s33, s21, 3"); a("s_add_u32 s33, s33, s30"); a(f"v_mov_b32 {v(GL+3)}, s33")
    a("s_waitcnt vmcnt(36)")
    for i in range(4): unpack(a, X[2*i], X[2*i+1], xr + i)
    ln_stats(a, X, mb, sq, rc, t0, t1, t2)
    for e in range(4):
        ln_pair(a, X[e], X[e+4], mb, sq, rc, xr + e, t0, t1, t2, t3)
        a(f"ds_write_b32 {v(vo)}, {v(xr+e)} offset:{LDS_XN + 32*e}")
    a("s_waitcnt lgkmcnt(0)")
    a(f"ds_read_b128 {v(X[0],4)}, {v(RA)} offset:{LDS_XN}"); a(f"ds_read_b128 {v(X[4],4)}, {v(RA)} offset:{LDS_XN+16}")
    AC = CL + 16
    for c in range(8): a(f"v_mov_b32 {v(AC+c)}, 0")
    a("s_add_u32 s62, s61, 0x9e3779b9")
    GD = CL + 24
    a(f"v_mov_b32 {v(GD+1)}, s62"); a(f"v_mov_b32 {v(GD+3)}, s62"); a(f"v_mov_b32 {v(GD+4)}, s63"); a(f"v_mov_b32 {v(GD+5)}, s62")
    a("s_waitcnt lgkmcnt(0)")
    for p in range(8):
        a(f"s_waitcnt vmcnt({20 + 14 - 2*p})")
        for cc in range(4):
            a(f"v_perm_b32 {v(T+2*cc)}, {v(W+8*p+4+cc)}, {v(W+8*p+cc)}, s25")
            a(f"v_perm_b32 {v(T+2*cc+1)}, {v(W+8*p+4+cc)}, {v(W+8*p+cc)}, s26")
        for c in range(8): a(f"v_dot2_f32_bf16 {v(AC+c)}, {v(T+c)}, {v(X[p])}, {v(AC+c)}")
    a.nop(3)
    fold8(AC)
    a(f"v_mov_b32 {v(GD)}, {v(AC)}"); a(f"v_mov_b32 {v(GD+2)}, {v(AC+1)}")
    a("s_mov_b32 s4, 0x000f000f"); a("s_mov_b32 s5, 0x000f000f")
    a("s_waitcnt vmcnt(16)")
    a("s_mov_b64 exec, s[4:5]")
    a(f"global_store_dwordx4 {v(GS)}, {v(GD,4)}, s[46:47] sc1")
    a("s_mov_b64 exec, 1")
    a(f"global_store_dwordx2 {v(GL+3)}, {v(GD+4,2)}, s[46:47] offset:{WS_XG} sc1")
    a("s_mov_b64 exec, -1")
    stamp()
    a("s_mov_b32 s30, 0"); a("s_mov_b32 s31, 0")
    GA = KB
    if noq: a(f"s_branch {name}_polled")
    a.label(f"{name}_poll")
    for i in range(8):
        a(f"s_bitcmp1_b32 s31, {i}"); a(f"s_cbranch_scc1 {name}_qk{i}")
        a(f"global_load_dwordx4 {v(GA+4*i,4)}, {v(GL + (i >> 2))}, s[46:47] offset:{1024*(i&3)} sc1")
        a.label(f"{name}_qk{i}")
    a(f"global_load_dwordx2 {v(GA+32,2)}, {v(GL+2)}, s[46:47] offset:{WS_XG} sc1")
    a("s_add_u32 s30, s30, 1")
    a("s_waitcnt vmcnt(0)")
    for i in range(8):
        a(f"v_cmp_ne_u32 vcc, s62, {v(GA+4*i+1)}"); a(f"v_cmp_ne_u32 s[4:5], s62, {v(GA+4*i+3)}")
        a("s_or_b64 vcc, vcc, s[4:5]"); a(f"s_cselect_b32 s34, 0, {1<<i}"); a("s_or_b32 s31, s31, s34")
    a(f"v_cmp_ne_u32 vcc, s62, {v(GA+33)}")
    a(f"s_cmp_gt_u32 s30, {SPIN_MAX}"); a(f"s_cbranch_scc1 {name}_polled")
    a(f"s_cbranch_vccnz {name}_poll")
    a("s_cmp_eq_u32 s31, 0xff"); a(f"s_cbranch_scc0 {name}_poll")
    a.label(f"{name}_polled")
    stamp()
    for i in range(4):
        a(f"v_add_f32 {v(GA+4*i)}, {v(GA+4*i)}, {v(GA+16+4*i)}"); a(f"v_add_f32 {v(GA+4*i+2)}, {v(GA+4*i+2)}, {v(GA+16+4*i+2)}")
        a(f"v_cvt_pk_bf16_f32 {v(T+4+i)}, {v(GA+4*i)}, {v(GA+4*i+2)}")
    a(f"v_lshlrev_b32 {v(t0)}, 2, v0")
    a(f"ds_write2st64_b32 {v(t0)}, {v(T+4)}, {v(T+5)} offset0:{LDS_Q//256} offset1:{LDS_Q//256+1}")
    a(f"ds_write2st64_b32 {v(t0)}, {v(T+6)}, {v(T+7)} offset0:{LDS_Q//256+2} offset1:{LDS_Q//256+3}")
    a(f"v_cmp_ne_u32 vcc, s63, {v(GA+32)}")
    a("s_cmp_eq_u64 vcc, 0"); a("s_cselect_b32 s29, 1, 0")
    a(f"v_mov_b32 {v(t0)}, 0"); a(f"v_mov_b32 {v(t1)}, s29")
    a(f"ds_write_b32 {v(t0)}, {v(t1)} offset:{LDS_FL}")
    a("s_waitcnt lgkmcnt(0)")
    a("s_barrier")
    tail_loads()
    if prio: a("s_setprio 0")
    init_state()
    a(f"s_branch {name}_join")
    a.label(f"{name}_w0wait")
    for i in range(3 if loopbar else 0): a("s_barrier")
    if not loopbar: a("s_sleep 127"); a("s_sleep 127")
    a(f"v_lshlrev_b32 {v(t0)}, 4, v0"); a("s_mov_b32 s30, 0")
    a.label(f"{name}_tg")
    a(f"global_load_dwordx4 {v(GA,4)}, {v(t0)}, s[46:47] offset:{WS_XG} sc1")
    a(f"global_load_dwordx4 {v(GA+4,4)}, {v(t0)}, s[46:47] offset:{WS_XG+1024} sc1")
    a("s_add_u32 s30, s30, 1")
    a("s_waitcnt vmcnt(0)")
    for i in (1, 3, 5, 7): a(f"v_xor_b32 {v(GA+i)}, s61, {v(GA+i)}")
    a(f"v_or3_b32 {v(GA+1)}, {v(GA+1)}, {v(GA+3)}, {v(GA+5)}"); a(f"v_or_b32 {v(GA+1)}, {v(GA+1)}, {v(GA+7)}")
    a(f"v_cmp_ne_u32 vcc, 0, {v(GA+1)}")
    a(f"s_cmp_gt_u32 s30, {SPIN_MAX}"); a(f"s_cbranch_scc1 {name}_tgd")
    a(f"s_cbranch_vccnz {name}_tg")
    a.label(f"{name}_tgd")
    for i in range(5 if loopbar else 0): a("s_barrier")
    a(f"s_branch {name}_last")
    nst[0] = nst_end
    return LDS_END

def build(fn, **kw):
    a = Asm(); name = KN + "_kernel"
    lds = gen_fused(a, name, **kw)
    out = f"; @launch grid=(256,1,1) block=(512,1,1) lds={lds}\n" + '.amdgcn_target "amdgcn-amd-amdhsa--gfx950"\n.text\n' + a.text()
    out += '.section .rodata,"a"\n' + kd(name, a.maxv + 1, max(a.maxs + 1, 16))
    open(fn, "w").write(out)

if __name__ == "__main__":
    build("v8.s")
    build("h_a.s", stamps=True, stop=True, loopbar=False, notail=True)
    build("h_b.s", stamps=True, stop=True, loopbar=False, tailpart=1)
    build("h_c.s", stamps=True, stop=True, loopbar=False, tailpart=2)
    build("h_d.s", stamps=True, stop=True, loopbar=False)
    build("h_e.s", stamps=True, stop=True, loopbar=False, wopol="")
    build("h_f.s", stamps=True, stop=True, loopbar=False, wopol="", qpol="")
```

```python
import re
TRANS = ("v_exp_f32", "v_log_f32", "v_rcp_f32", "v_rsq_f32", "v_sqrt_f32", "v_sin_f32", "v_cos_f32")
def regs_of(tok):
    tok = tok.strip()
    tok = re.sub(r"^-", "", tok)
    m = re.match(r"^abs\((.*)\)$", tok) or re.match(r"^\|(.*)\|$", tok)
    if m: tok = m.group(1)
    m = re.match(r"^([vsa])(\d+)$", tok)
    if m: return [(m.group(1), int(m.group(2)))]
    m = re.match(r"^([vsa])\[(\d+):(\d+)\]$", tok)
    if m: return [(m.group(1), i) for i in range(int(m.group(2)), int(m.group(3)) + 1)]
    if tok == "vcc": return [("s", 106), ("s", 107)]
    if tok == "vcc_lo": return [("s", 106)]
    if tok == "vcc_hi": return [("s", 107)]
    if tok == "exec": return [("s", 126), ("s", 127)]
    if tok == "m0": return [("s", 124)]
    return []
def split_ops(s):
    out = []; depth = 0; cur = ""
    for ch in s:
        if ch in "[(": depth += 1
        if ch in "])": depth -= 1
        if ch == "," and depth == 0: out.append(cur.strip()); cur = ""
        else: cur += ch
    if cur.strip(): out.append(cur.strip())
    return out

class Asm:
    def __init__(self):
        self.L = []
        self.t = 0
        self.vw = {}
        self.sw = {}
        self.mc = {}
        self.st = {}
        self.execw = -100
        self.m0w = -100
        self.maxv = 0; self.maxs = 0; self.maxa = -1
    def raw(self, s): self.L.append(s)
    def comment(self, s): self.L.append("  ; " + s)
    def label(self, s): self.L.append(s + ":")
    def nop(self, n):
        while n > 0:
            k = min(n, 16); self.L.append(f"  s_nop {k-1}"); self.t += k; n -= k
    def fence(self):
        need = 0
        for r, (t, c) in self.vw.items():
            d = {"valu": 2, "trans": 2, "dot": 3, "mfma4": 8, "mfma8": 12}[c]
            need = max(need, d - (self.t - t - 1))
        for r, t in self.sw.items(): need = max(need, 5 - (self.t - t - 1))
        for r, (t, p) in self.mc.items(): need = max(need, (3 if p == 4 else 7) - (self.t - t - 1))
        for r, t in self.st.items(): need = max(need, 2 - (self.t - t - 1))
        if need > 0: self.nop(need)
    def __call__(self, s):
        s = s.strip()
        m = re.match(r"^(\S+)\s*(.*)$", s)
        op, rest = m.group(1), m.group(2)
        if op == "s_nop":
            self.L.append("  " + s); self.t += int(rest) + 1; return
        ops = split_ops(rest)
        mods = ""
        if ops:
            last = ops[-1]
            parts = last.split(None, 1)
            if len(parts) == 2 and not last.startswith("hwreg") and not op.startswith("s_waitcnt"):
                ops[-1] = parts[0]; mods = parts[1]
        is_mfma = op.startswith("v_mfma")
        is_valu = op.startswith("v_") and not is_mfma
        is_vmem = op.startswith(("buffer_", "global_", "flat_"))
        is_ds = op.startswith("ds_")
        is_dpp = op.endswith("_dpp") or "quad_perm" in mods or "row_" in mods
        is_perml = op.startswith("v_permlane")
        is_rdl = op.startswith(("v_readlane", "v_readfirstlane"))
        W = []; R = []; C = []; STD = []
        rl = [regs_of(o) for o in ops]
        if is_mfma:
            W = rl[0]; R = rl[1] + rl[2]; C = rl[3]
        elif is_perml:
            W = rl[0] + rl[1]; R = rl[0] + rl[1]
        elif is_valu:
            W = rl[0]; R = sum(rl[1:], [])
            if op.startswith(("v_fmac", "v_dot2c", "v_writelane")): R += rl[0]
            if op.startswith(("v_add_co", "v_sub_co", "v_addc_co", "v_subb_co", "v_div_scale", "v_mad_u64")):
                W = rl[0] + rl[1]; R = sum(rl[2:], [])
            if op.startswith("v_cndmask") and len(ops) == 3: R += regs_of("vcc")
            if op.startswith("v_cmpx"): W += regs_of("exec")
            if is_dpp and not op.startswith("v_mov"): pass
        elif is_vmem:
            if "load" in op and " lds" not in (" " + mods) and "lds" not in op:
                W = rl[0]; R = sum(rl[1:], [])
            elif "atomic" in op:
                if "sc0" in mods and op.startswith("global"): W = rl[0]; R = sum(rl[1:], [])
                elif "sc0" in mods: W = rl[0]; R = sum(rl, [])
                else: R = sum(rl, [])
            else:
                R = sum(rl, [])
                if "store" in op and op.endswith(("x4", "x3")):
                    STD = rl[0] if op.startswith("buffer") else rl[1]
        elif is_ds:
            if op.startswith(("ds_read", "ds_bpermute", "ds_permute", "ds_swizzle")) or "_rtn" in op:
                W = rl[0]; R = sum(rl[1:], [])
            else: R = sum(rl, [])
        else:
            if op.startswith(("s_cmp", "s_cbranch", "s_branch", "s_waitcnt", "s_barrier", "s_endpgm", "s_sleep", "s_setprio", "s_bitcmp")):
                R = sum(rl, [])
            else:
                W = rl[0] if rl else []; R = sum(rl[1:], [])
        for (k, i) in W + R + C:
            if k == "v": self.maxv = max(self.maxv, i)
            if k == "a": self.maxa = max(self.maxa, i)
            if k == "s" and i < 102: self.maxs = max(self.maxs, i)
        need = 0
        def dist(t): return self.t - t - 1
        def req(n, t):
            nonlocal need
            need = max(need, n - dist(t))
        vec = lambda regs: [r for r in regs if r[0] in "va"]
        for r in vec(R):
            if r in self.vw:
                t, c = self.vw[r]
                if c.startswith("mfma"):
                    req(8 if c == "mfma4" else 12, t)
                else:
                    if c == "dot" and not (op.startswith("v_dot") and len(rl) > 3 and r in rl[3] and r not in rl[1] + rl[2]): req(3, t)
                    if is_mfma: req(2, t)
                    if is_dpp or is_perml: req(2, t)
                    if is_rdl: req(1, t)
                    if c == "trans" and (is_valu and not op.startswith(TRANS) or is_mfma or is_vmem or is_ds): req(1, t)
        for r in vec(C):
            if r in self.vw:
                t, c = self.vw[r]
                if c.startswith("mfma"):
                    if not (rl[0] == rl[3]): req(6 if c == "mfma4" else 10, t)
                else: req(2, t)
        for r in vec(W):
            if r in self.vw:
                t, c = self.vw[r]
                if c.startswith("mfma") and not (is_mfma and rl[0] == rl[3]):
                    req(8 if c == "mfma4" else 12, t)
                if c == "dot" and not op.startswith("v_dot"): req(3, t)
            if r in self.mc and is_valu:
                t, p = self.mc[r]; req(3 if p == 4 else 7, t)
            if r in self.st:
                req(2 if is_valu else 1, self.st[r])
        for r in [x for x in R if x[0] == "s"]:
            if r in self.sw:
                t = self.sw[r]
                if is_valu or is_mfma: req(4 if (is_rdl or op.startswith("v_writelane")) and r in sum(rl[2:], []) else 2, t)
                if is_vmem: req(5, t)
                if op.startswith("v_div_fmas"): req(4, t)
        if op.startswith("v_div_fmas") and ("s", 106) in self.sw: req(4, self.sw[("s", 106)])
        if (is_vmem and ("lds" in op or " lds" in " " + mods)): req(1, self.m0w)
        if need > 0: self.nop(need)
        self.L.append("  " + s)
        now = self.t
        self.t += 1
        if is_mfma:
            cls = "mfma8" if "32x32" in op else "mfma4"
            for r in W: self.vw[r] = (now, cls)
            for r in C: self.mc[r] = (now, 8 if cls == "mfma8" else 4)
        elif is_valu:
            cls = "trans" if op.startswith(TRANS) else ("dot" if op.startswith("v_dot") else "valu")
            for r in W:
                if r[0] in "va": self.vw[r] = (now, cls)
                else: self.sw[r] = now
        else:
            for r in W:
                if r[0] in "va": self.vw.pop(r, None)
                else:
                    self.sw.pop(r, None)
                    if r == ("s", 124): self.m0w = now
        for r in STD: self.st[r] = now
    def text(self): return "\n".join(self.L) + "\n"

def v(i, n=1): return f"v{i}" if n == 1 else f"v[{i}:{i+n-1}]"
def s(i, n=1): return f"s{i}" if n == 1 else f"s[{i}:{i+n-1}]"
DPPM = "row_mask:0xf bank_mask:0xf"
def f32hex(x):
    import struct
    return "0x%08x" % struct.unpack("<I", struct.pack("<f", x))[0]
```

```python
import sys
from asmlib import *
from gen import allreduce, rne1, rne2, unpack, ln_stats, ln_pair, kernel_head, kd, transp_mfma, LOG2E, SCALE, KN
WS_EP = 0x0; WS_XG = 0x400; WS_QG = 0x10000; WS_OP = 0x40000; WS_ML = 0xC0000; WS_YP = 0xD0000
WS_STAMP = 0x10000000
SPIN_MAX = 400000

def ln_stats_fast(a, X, mb, sq, rc, t0, t1, t2, t3, D, sp):
    a(f"v_readfirstlane_b32 s{sp}, {v(X[0])}")
    a(f"s_mov_b32 s{sp+1}, s{sp}")
    for i in range(0, 8, 2): a(f"v_pk_add_f32 {v(D+i,2)}, {v(X[i],2)}, s[{sp}:{sp+1}] neg_lo:[0,1] neg_hi:[0,1]")
    a(f"v_pk_mul_f32 {v(D+8,2)}, {v(D,2)}, {v(D,2)}"); a(f"v_pk_add_f32 {v(D+10,2)}, {v(D,2)}, {v(D+2,2)}")
    a(f"v_pk_fma_f32 {v(D+8,2)}, {v(D+2,2)}, {v(D+2,2)}, {v(D+8,2)}"); a(f"v_pk_add_f32 {v(D,2)}, {v(D+4,2)}, {v(D+6,2)}")
    a(f"v_pk_fma_f32 {v(D+8,2)}, {v(D+4,2)}, {v(D+4,2)}, {v(D+8,2)}"); a(f"v_pk_add_f32 {v(D+10,2)}, {v(D+10,2)}, {v(D,2)}")
    a(f"v_pk_fma_f32 {v(D+8,2)}, {v(D+6,2)}, {v(D+6,2)}, {v(D+8,2)}")
    a(f"v_add_f32 {v(t0)}, {v(D+10)}, {v(D+11)}"); a(f"v_add_f32 {v(t1)}, {v(D+8)}, {v(D+9)}")
    a(f"v_permlane32_swap_b32 {v(t0)}, {v(t1)}"); a(f"v_add_f32 {v(t0)}, {v(t0)}, {v(t1)}")
    allreduce(a, "v_add_f32", t0, t2, lanes=32)
    a(f"v_readlane_b32 s{sp+3}, {v(t0)}, 0"); a(f"v_readlane_b32 s{sp+2}, {v(t0)}, 32")
    a(f"v_mov_b32 {v(t2)}, {f32hex(1/512)}")
    a(f"v_mul_f32 {v(t0)}, s{sp+3}, {v(t2)}")
    a(f"v_mul_f32 {v(t1)}, s{sp+2}, {v(t2)}")
    a(f"v_add_f32 {v(t3)}, s{sp}, {v(t0)}")
    a(f"v_fma_f32 {v(t1)}, -{v(t0)}, {v(t0)}, {v(t1)}")
    a(f"v_max_f32 {v(t1)}, 0, {v(t1)}")
    rne2(a, mb, t1, t3, t1, t2)
    a(f"v_add_f32 {v(t1)}, {f32hex(1e-5)}, {v(t1)}")
    rne1(a, t1, t1, t2)
    a(f"v_sqrt_f32 {v(t1)}, {v(t1)}")
    rne1(a, sq, t1, t2)
    a(f"v_rcp_f32 {v(rc)}, {v(sq)}")

def gen_fused(a, name, kvpol="nt", stamps=False, first=4, prio=True, wopol="nt", qpol="nt", ps2=0, ps3=0, local=True, ldsround=7, loopbar=False, tailround=-1, noq=0, notail=False, stop=False, blockmap=False, kfirst=False, tailpart=3, vpol=None, rep8=False, qsleep=8, xgfirst=False, xglast=True, qdelay=0, rot=0, noclr=False, fastln=True, pk=True, fine=False, rprio=None, nocomp=False, bare=False, p3x=True, dbgst=False, codewarm=0, qx=0, kvx=0):
    if vpol is None: vpol = kvpol
    vK0, vK1, vV0, vV1 = 1, 2, 3, 4
    m, negm, l, alR, mnew, al, tm = 5, 6, 7, 8, 9, 10, 11
    S = 12; P = 20; C4 = 24; Q = 28; O = 44; T = 76
    DA = 108
    KA, VA, KB, VB = 112, 144, 176, 208
    M = 240
    WO = M; W1, B1, W2 = M+8, M+10, M+12; XR = M+14; DUM = M+15
    LDS_XN = 0; LDS_Q = 1024; LDS_FL = 2048; LDS_ML = 2304
    LDS_C = 2560; LDS_R2 = LDS_C + 2048; LDS_FR = LDS_R2 + 1024; LDS_H = LDS_FR + 256
    LDS_OM = LDS_H + 2048; LDS_R1 = LDS_OM + 16384; LDS_D = LDS_R1 + 8192; LDS_END = LDS_D + 7*16384
    assert LDS_OM % 256 == 0 and LDS_R1 // 256 + 28 < 256 and LDS_R2 % 256 == 0
    nst = [0]
    def stamp():
        if stamps:
            a(f"s_memrealtime s[{64+2*nst[0]}:{65+2*nst[0]}]"); nst[0] += 1
    def tail_loads():
        t0, t1, t2 = C4, C4+1, C4+2
        if notail: return
        a("s_lshl_b32 s29, s20, 19"); a("s_and_b32 s30, s21, 1"); a("s_lshl_b32 s30, s30, 18"); a("s_add_u32 s29, s29, s30")
        a("s_lshl_b32 s30, s3, 10"); a("s_add_u32 s29, s29, s30"); a("s_lshr_b32 s30, s21, 1"); a("s_lshl_b32 s30, s30, 6"); a("s_add_u32 s29, s29, s30")
        a(f"v_lshrrev_b32 {v(t0)}, 2, v0"); a(f"v_lshlrev_b32 {v(t0)}, 13, {v(t0)}"); a(f"v_and_b32 {v(t1)}, 3, v0")
        a(f"v_lshl_add_u32 {v(t0)}, {v(t1)}, 4, {v(t0)}"); a(f"v_add_u32 {v(t0)}, s29, {v(t0)}"); a(f"v_add_u32 {v(t1)}, 0x20000, {v(t0)}")
        a("s_waitcnt lgkmcnt(0)")
        if tailpart & 1:
            a(f"global_load_dwordx4 {v(WO,4)}, {v(t0)}, s[48:49] {wopol}"); a(f"global_load_dwordx4 {v(WO+4,4)}, {v(t1)}, s[48:49] {wopol}")
        if not tailpart & 2: return
        a("s_lshl_b32 s29, s3, 8"); a(f"v_lshl_add_u32 {v(t0)}, v0, 2, s29")
        a(f"v_add_u32 {v(t1)}, 2048, {v(t0)}"); a(f"v_min_u32 {v(t1)}, {895*4}, {v(t1)}")
        a(f"v_lshrrev_b32 {v(t2)}, 1, {v(t0)}")
        for (r, sp) in ((W1, "s[52:53]"), (B1, "s[54:55]"), (W2, "s[56:57]")):
            a(f"global_load_dword {v(r)}, {v(t0)}, {sp}"); a(f"global_load_dword {v(r+1)}, {v(t1)}, {sp}")
        a(f"global_load_ushort {v(XR)}, {v(t2)}, s[36:37]")
        a(f"global_load_ushort {v(DUM)}, {v(t2)}, s[50:51]")
    def init_state():
        a(f"v_mov_b32 {v(m)}, 0xff800000"); a(f"v_mov_b32 {v(l)}, 0"); a(f"v_mov_b32 {v(negm)}, 0")
        for i in range(32): a(f"v_mov_b32 {v(O+i)}, 0")
        a(f"v_bfe_u32 {v(tm)}, v0, 2, 2"); a(f"v_lshrrev_b32 {v(al)}, 4, v0")
        a(f"v_lshlrev_b32 {v(tm)}, 8, {v(tm)}"); a(f"v_lshl_add_u32 {v(tm)}, {v(al)}, 4, {v(tm)}")
        a("s_waitcnt lgkmcnt(0)")
        a("s_load_dword s60, s[58:59], 0")
        a("s_add_u32 s61, s61, 0x9e3779b9")
    def late_setup():
        a("s_load_dwordx2 s[48:49], s[0:1], 32")
        a("s_load_dwordx8 s[52:59], s[0:1], 48")
        a("s_load_dwordx2 s[50:51], s[0:1], 80")
        a(f"s_load_dword s61, s[46:47], {WS_EP}")
        a("s_getreg_b32 s63, hwreg(HW_REG_XCC_ID, 0, 4)")
        a("s_mov_b32 s25, 0x05040100"); a("s_mov_b32 s26, 0x07060302")
        a(f"s_mov_b32 s27, {f32hex(LOG2E)}"); a(f"s_mov_b32 s28, {f32hex(SCALE)}")
    def kv_setup():
        a("s_lshl_b32 s29, s3, 13")
        if blockmap:
            a("s_mul_i32 s29, s3, 0x12000"); a("s_sub_u32 s29, s29, 0x10000"); a("s_max_i32 s29, s29, 0")
        if rot:
            a(f"s_mul_i32 s30, s2, {rot}"); a("s_lshl_b32 s30, s30, 13"); a("s_add_u32 s29, s29, s30"); a("s_and_b32 s29, s29, 0x7ffff")
        a(f"v_and_b32 {v(vK0)}, 3, v0"); a(f"v_lshlrev_b32 {v(vK0)}, 10, {v(vK0)}")
        a(f"v_bfe_u32 {v(tm)}, v0, 2, 2"); a(f"v_lshl_add_u32 {v(vK0)}, {v(tm)}, 8, {v(vK0)}")
        a(f"v_lshrrev_b32 {v(tm)}, 4, v0"); a(f"v_lshl_add_u32 {v(vK0)}, {v(tm)}, 4, {v(vK0)}")
        a(f"v_add_u32 {v(vK0)}, s29, {v(vK0)}"); a(f"v_add_u32 {v(vK1)}, 0x1000, {v(vK0)}")
        a(f"v_lshlrev_b32 {v(vV0)}, 4, v0"); a(f"v_add_u32 {v(vV0)}, s29, {v(vV0)}"); a(f"v_add_u32 {v(vV1)}, 0x1000, {v(vV0)}")
        a("s_lshl_b32 s29, s20, 24"); a(f"s_xor_b32 s30, s21, {kvx}"); a("s_lshl_b32 s30, s30, 19"); a("s_add_u32 s29, s29, s30")
        a("s_mov_b32 s10, 0x80000"); a("s_mov_b32 s11, 0x20000"); a("s_mov_b32 s14, 0x80000"); a("s_mov_b32 s15, 0x20000")
        a("s_waitcnt lgkmcnt(0)")
        a("s_add_u32 s8, s38, s29"); a("s_addc_u32 s9, s39, 0")
        a("s_add_u32 s12, s40, s29"); a("s_addc_u32 s13, s41, 0")
    def fold8(A):
        for c in range(4): a(f"v_permlane32_swap_b32 {v(A+c)}, {v(A+c+4)}")
        for c in range(4): a(f"v_add_f32 {v(A+c)}, {v(A+c)}, {v(A+c+4)}")
        for c in range(2): a(f"v_permlane16_swap_b32 {v(A+c)}, {v(A+c+2)}")
        for c in range(2): a(f"v_add_f32 {v(A+c)}, {v(A+c)}, {v(A+c+2)}")
        for rr in (8, 4):
            for c in range(2): a(f"v_add_f32_dpp {v(A+c)}, {v(A+c)}, {v(A+c)} row_ror:{rr} {DPPM}")
    kernel_head(a, name)
    a("s_cmp_ge_u32 s2, 256"); a(f"s_cbranch_scc1 {name}_end")
    stamp()
    a("s_load_dwordx8 s[36:43], s[0:1], 0")
    a("s_load_dwordx2 s[46:47], s[0:1], 96")
    a("v_lshrrev_b32 v1, 6, v0")
    a("v_readfirstlane_b32 s3, v1")
    a("v_and_b32 v0, 63, v0")
    a("s_and_b32 s20, s2, 7"); a("s_lshr_b32 s21, s2, 3")
    a("s_cmp_eq_u32 s3, 0"); a(f"s_cbranch_scc1 {name}_w0")
    a(f"s_mov_b32 s22, {0x2000 if blockmap else 0xe000}")
    kv_setup()
    cnt = [0]
    def hook():
        cnt[0] += 1
        if cnt[0] == first + 1:
            late_setup()
            a("s_barrier")
    VQ = []
    def adv(r0, r1):
        a(f"v_add_u32 {v(r0)}, s22, {v(r0)}")
        if rot:
            a(f"v_and_b32 {v(r0)}, 0x7ffff, {v(r0)}"); a(f"v_add_u32 {v(r1)}, 0x1000, {v(r0)}")
        else: a(f"v_add_u32 {v(r1)}, s22, {v(r1)}")
    def wait_for(lab):
        if lab not in VQ: return
        idx = max(i for i, x in enumerate(VQ) if x == lab)
        n = len(VQ) - 1 - idx
        a(f"s_waitcnt vmcnt({min(n, 63)})")
        del VQ[:idx+1]
    def dmaK(lab):
        for j in range(8):
            a(f"s_add_u32 m0, s24, {j*1024 - (j&3)*64}")
            a(f"buffer_load_dwordx4 {v(vK0 if j < 4 else vK1)}, s[8:11], 0 offen offset:{(j&3)*64} {kvpol} lds"); VQ.append(lab)
        adv(vK0, vK1)
    def dmaV(lab):
        for j in range(8):
            if (j & 3) == 0: a(f"s_add_u32 m0, s24, {8192 + (j>>2)*4096}")
            a(f"buffer_load_dwordx4 {v(vV0 if j < 4 else vV1)}, s[12:15], 0 offen offset:{(j&3)*1024} {vpol} lds"); VQ.append(lab)
        adv(vV0, vV1)
    def loadK(K, pc=False, lab="x"):
        for j in range(8):
            if pc: hook()
            VQ.append(lab)
            a(f"buffer_load_dwordx4 {v(K+4*j,4)}, {v(vK0 if j < 4 else vK1)}, s[8:11], 0 offen offset:{(j&3)*64} {kvpol}")
        adv(vK0, vK1)
    def loadV(V, pc=False, lab="x"):
        for j in range(8):
            if pc: hook()
            VQ.append(lab)
            a(f"buffer_load_dwordx4 {v(V+4*j,4)}, {v(vV0 if j < 4 else vV1)}, s[12:15], 0 offen offset:{(j&3)*1024} {vpol}")
        adv(vV0, vV1)
    if stamps:
        a("s_mov_b64 s[66:67], 0"); a("s_mov_b64 s[68:69], 0")
    nst_save = nst[0]; nst[0] += 2
    loadK(KA, True, "K0"); loadV(VA, True, "V0"); loadK(KB, True, "K1"); loadV(VB, True, "V1")
    a("s_lshl_b32 s24, s3, 14"); a(f"s_add_u32 s24, s24, {LDS_D - 16384}")
    if ldsround < 9:
        dmaK(f"K{ldsround}"); dmaV(f"V{ldsround}")
    if tailround < 0:
        tail_loads(); VQ.extend(["t"] * (0 if notail else (2 if tailpart & 1 else 0) + (8 if tailpart & 2 else 0)))
    init_state()
    a("s_barrier")
    a.label(f"{name}_join")
    for t in range(4): a(f"ds_read_b128 {v(Q+4*t,4)}, {v(tm)} offset:{LDS_Q+64*t}")
    a(f"v_mov_b32 {v(al)}, 0")
    a(f"ds_read_b32 {v(al)}, {v(al)} offset:{LDS_FL}")
    a("s_waitcnt lgkmcnt(0)")
    a(f"v_readfirstlane_b32 s62, {v(al)}")
    a("s_lshl_b32 s60, s60, 16")
    stamp()
    a("s_cmp_eq_u32 s3, 0"); a(f"s_cbranch_scc1 {name}_w0wait")
    a(f"v_lshl_add_u32 {v(DA)}, v0, 4, s24")
    NR = 9
    def tile(r):
        if nocomp:
            real = a
            class F:
                def __call__(self, s_):
                    if s_.startswith(("v_mfma", "v_cvt", "v_mul", "v_max", "v_exp", "v_fma", "v_perm", "v_add_f32", "v_lshlrev_b32", "v_and_b32", "v_cmp", "s_cbranch_vccz", "v_mov", "v_sub")): return
                    real(s_)
                def __getattr__(self, n): return getattr(real, n)
            return tile2(r, F())
        return tile2(r, a)
    def tile2(r, a):
        K, V = (KA, VA) if r % 2 == 0 else (KB, VB)
        nxt = r + 2
        fromlds = r == ldsround
        if r == NR - 1:
            a.fence(); a.label(f"{name}_last")
        if rprio and (r == 0 or rprio[r] != rprio[r-1]): a(f"s_setprio {rprio[r]}")
        if fromlds: a("s_waitcnt lgkmcnt(0)")
        else: wait_for(f"K{r}")
        for t in range(4):
            for g in range(2):
                c = "0" if t == 0 else v(S+4*g, 4)
                a(f"v_mfma_f32_16x16x32_bf16 {v(S+4*g,4)}, {v(K+16*g+4*t,4)}, {v(Q+4*t,4)}, {c}")
        if nxt == ldsround:
            wait_for(f"K{nxt}")
            for j in range(8): a(f"ds_read_b128 {v(K+4*j,4)}, {v(DA)} offset:{1024*j}")
        elif nxt < NR: loadK(K, lab=f"K{nxt}")
        for i in range(4): a(f"v_cvt_pk_bf16_f32 {v(C4+i)}, {v(S+2*i)}, {v(S+2*i+1)}")
        for i in range(4): unpack(a, S+2*i, S+2*i+1, C4+i)
        for i in range(8): a(f"v_mul_f32 {v(S+i)}, s28, {v(S+i)}")
        for i in range(4): a(f"v_cvt_pk_bf16_f32 {v(C4+i)}, {v(S+2*i)}, {v(S+2*i+1)}")
        for i in range(4): unpack(a, S+2*i, S+2*i+1, C4+i)
        a(f"v_max3_f32 {v(mnew)}, {v(m)}, {v(S)}, {v(S+1)}")
        for i in range(1, 4): a(f"v_max3_f32 {v(mnew)}, {v(mnew)}, {v(S+2*i)}, {v(S+2*i+1)}")
        a(f"v_cmp_gt_f32 vcc, {v(mnew)}, {v(m)}")
        a(f"s_cbranch_vccz {name}_skip{r}")
        a(f"v_mov_b32 {v(tm)}, {v(mnew)}"); a(f"v_permlane16_swap_b32 {v(mnew)}, {v(tm)}"); a(f"v_max_f32 {v(mnew)}, {v(mnew)}, {v(tm)}")
        a(f"v_mov_b32 {v(tm)}, {v(mnew)}"); a(f"v_permlane32_swap_b32 {v(mnew)}, {v(tm)}"); a(f"v_max_f32 {v(mnew)}, {v(mnew)}, {v(tm)}")
        a(f"v_sub_f32 {v(al)}, {v(m)}, {v(mnew)}"); a(f"v_mul_f32 {v(al)}, s27, {v(al)}"); a(f"v_exp_f32 {v(al)}, {v(al)}")
        a(f"v_mov_b32 {v(m)}, {v(mnew)}")
        a(f"v_mul_f32_e64 {v(negm)}, -{v(mnew)}, s27")
        a(f"v_mul_f32 {v(l)}, {v(l)}, {v(al)}")
        for rr in range(4): a(f"v_mov_b32_dpp {v(alR)}, {v(al)} row_newbcast:{4*rr} row_mask:{hex(1<<rr)} bank_mask:0xf")
        for e in range(8): a(f"v_mul_f32 {v(O+4*e)}, {v(alR)}, {v(O+4*e)}")
        a.label(f"{name}_skip{r}")
        for i in range(8): a(f"v_fma_f32 {v(S+i)}, {v(S+i)}, s27, {v(negm)}")
        for i in range(8): a(f"v_exp_f32 {v(S+i)}, {v(S+i)}")
        for i in range(4): a(f"v_cvt_pk_bf16_f32 {v(P+i)}, {v(S+2*i)}, {v(S+2*i+1)}")
        for i in range(4): a(f"v_add_f32 {v(C4+i)}, {v(S+2*i)}, {v(S+2*i+1)}")
        a(f"v_add_f32 {v(C4)}, {v(C4)}, {v(C4+1)}"); a(f"v_add_f32 {v(C4+2)}, {v(C4+2)}, {v(C4+3)}")
        a(f"v_add_f32 {v(C4)}, {v(C4)}, {v(C4+2)}"); a(f"v_add_f32 {v(l)}, {v(l)}, {v(C4)}")
        if not fromlds: wait_for(f"V{r}")
        def pre():
            if nxt == ldsround:
                wait_for(f"V{nxt}")
                for j in range(8): a(f"ds_read_b128 {v(V+4*j,4)}, {v(DA)} offset:{8192+1024*j}")
            elif nxt < NR: loadV(V, lab=f"V{nxt}")
        transp_mfma(a, V, T, P, O, 25, 26, between=pre)
        if tailround == 100 and r < 7:
            a(f"s_cmp_lg_u32 s3, {r+1}"); a(f"s_cbranch_scc1 {name}_tl{r}")
            tail_loads()
            a.label(f"{name}_tl{r}")
        if r == tailround:
            tail_loads(); VQ.extend(["t"] * (0 if notail else (2 if tailpart & 1 else 0) + (8 if tailpart & 2 else 0)))
        if r < NR - 1 and loopbar: a("s_barrier")
    for r in range(NR): tile(r)
    stamp()
    t0, t1, t2, t3 = C4, C4+1, C4+2, C4+3
    if stop:
        for i in range(5): stamp()
        a(f"s_branch {name}_fin2")
        nst[0] -= 5
    a.fence()
    a("s_cmp_eq_u32 s3, 0"); a(f"s_cbranch_scc1 {name}_tg0")
    a.label(f"{name}_tgd")
    a(f"v_mov_b32 {v(tm)}, {v(l)}"); a(f"v_permlane16_swap_b32 {v(l)}, {v(tm)}"); a(f"v_add_f32 {v(l)}, {v(l)}, {v(tm)}")
    a("s_lshl_b32 s29, s3, 11")
    a(f"v_lshl_add_u32 {v(t0)}, v0, 2, s29")
    a(f"v_mov_b32 {v(tm)}, {v(l)}"); a(f"v_permlane32_swap_b32 {v(l)}, {v(tm)}"); a(f"v_add_f32 {v(S+1)}, {v(l)}, {v(tm)}")
    a("s_lshl_b32 s29, s3, 3")
    a(f"v_lshl_add_u32 {v(al)}, v0, 4, s29")
    a(f"v_mul_f32 {v(S)}, s27, {v(m)}")
    a("s_mov_b64 exec, 0x1111")
    a(f"ds_write_b64 {v(al)}, {v(S,2)} offset:{LDS_ML}")
    a("s_mov_b64 exec, -1")
    for k in range(4): a(f"ds_write2st64_b32 {v(t0)}, {v(O+8*k)}, {v(O+8*k+4)} offset0:{LDS_OM//256+2*k} offset1:{LDS_OM//256+2*k+1}")
    a(f"v_lshrrev_b32 {v(tm)}, 4, v0"); a(f"v_lshlrev_b32 {v(tm)}, 6, {v(tm)}")
    a("s_lshl_b32 s30, s3, 8")
    a(f"v_lshl_add_u32 {v(al)}, v0, 2, s30")
    a("s_lshl_b32 s30, s20, 16"); a("s_lshl_b32 s34, s21, 10"); a("s_add_u32 s30, s30, s34"); a("s_lshl_b32 s34, s3, 7"); a("s_add_u32 s30, s30, s34")
    a(f"s_add_u32 s30, s30, {WS_OP}")
    a(f"v_lshrrev_b32 {v(t1)}, 5, v0"); a(f"v_lshlrev_b32 {v(t1)}, 15, {v(t1)}"); a(f"v_and_b32 {v(t2)}, 31, v0")
    a(f"v_lshl_add_u32 {v(t1)}, {v(t2)}, 2, {v(t1)}"); a(f"v_add_u32 {v(t1)}, s30, {v(t1)}")
    a("s_lshl_b32 s30, s20, 10"); a("s_lshl_b32 s34, s21, 3"); a("s_add_u32 s30, s30, s34")
    a(f"s_add_u32 s30, s30, {WS_ML}"); a(f"v_lshl_add_u32 {v(P)}, v0, 4, s30")
    a("s_mov_b32 s6, 0x00010001"); a("s_mov_b32 s7, 0x00010001")
    a("s_waitcnt lgkmcnt(0)")
    a("s_barrier")
    for i in range(4): a(f"ds_read_b128 {v(T+4*i,4)}, {v(tm)} offset:{LDS_ML+16*i}")
    for w in range(0, 8, 2):
        a(f"ds_read2st64_b32 {v(T+16+w,2)}, {v(al)} offset0:{LDS_OM//256 + 8*w} offset1:{LDS_OM//256 + 8*(w+1)}")
    ML = VA; OO = KB; ACC = VA + 8; CW = VA + 16; vx = VA + 4; U = VA + 24
    aML = KA; aO = KA + 1
    a("s_and_b32 s33, s21, 1")
    a("s_lshl_b32 s29, s20, 10"); a("s_lshl_b32 s30, s33, 9"); a("s_add_u32 s29, s29, s30"); a(f"s_add_u32 s29, s29, {WS_ML}")
    a(f"v_lshl_add_u32 {v(aML)}, {v(t2)}, 4, s29")
    a("s_lshl_b32 s29, s20, 16"); a("s_lshl_b32 s30, s33, 15"); a("s_add_u32 s29, s29, s30"); a("s_lshl_b32 s30, s3, 12"); a("s_add_u32 s29, s29, s30")
    a(f"s_add_u32 s29, s29, {WS_OP}")
    a(f"v_lshl_add_u32 {v(aO)}, v0, 4, s29")
    a("s_waitcnt lgkmcnt(4)")
    Mx = S
    a(f"v_max3_f32 {v(Mx)}, {v(T)}, {v(T+2)}, {v(T+4)}"); a(f"v_max3_f32 {v(t0)}, {v(T+6)}, {v(T+8)}, {v(T+10)}")
    a(f"v_max3_f32 {v(Mx)}, {v(Mx)}, {v(T+12)}, {v(T+14)}"); a(f"v_max_f32 {v(Mx)}, {v(Mx)}, {v(t0)}")
    for w in range(8): a(f"v_sub_f32 {v(T+2*w)}, {v(T+2*w)}, {v(Mx)}")
    for w in range(8): a(f"v_exp_f32 {v(T+2*w)}, {v(T+2*w)}")
    a("s_waitcnt lgkmcnt(0)")
    a(f"v_mul_f32 {v(S+2)}, {v(T)}, {v(T+16)}"); a(f"v_mul_f32 {v(S+3)}, {v(T+2)}, {v(T+17)}")
    for w in range(2, 8): a(f"v_fmac_f32 {v(S+2+(w&1))}, {v(T+2*w)}, {v(T+16+w)}")
    a(f"v_add_f32 {v(S+2)}, {v(S+2)}, {v(S+3)}")
    a(f"v_min_u32 {v(S+2)}, -2, {v(S+2)}")
    def dual_store(txt, lab):
        if local:
            a("s_cmp_eq_u32 s62, 1"); a(f"s_cbranch_scc1 {name}_{lab}a")
            a(txt + " sc1"); a(f"s_branch {name}_{lab}b")
            a.label(f"{name}_{lab}a"); a(txt); a.label(f"{name}_{lab}b")
        else: a(txt + " sc1")
    dual_store(f"global_store_dword {v(t1)}, {v(S+2)}, s[46:47]", "so")
    a("s_cmp_lg_u32 s3, 0"); a(f"s_cbranch_scc1 {name}_noml")
    a(f"v_mul_f32 {v(S+1)}, {v(T)}, {v(T+1)}"); a(f"v_mul_f32 {v(S+3)}, {v(T+2)}, {v(T+3)}")
    for w in range(2, 8): a(f"v_fmac_f32 {v(S+1+2*(w&1))}, {v(T+2*w)}, {v(T+2*w+1)}")
    a(f"v_add_f32 {v(S+1)}, {v(S+1)}, {v(S+3)}")
    a(f"v_min_u32 {v(S)}, -2, {v(Mx)}"); a(f"v_min_u32 {v(S+1)}, -2, {v(S+1)}")
    a("s_mov_b64 exec, s[6:7]")
    dual_store(f"global_store_dwordx2 {v(P)}, {v(S,2)}, s[46:47]", "sm")
    a("s_mov_b64 exec, -1")
    a.label(f"{name}_noml")
    stamp()
    a("s_mov_b32 s30, 0"); a("s_mov_b32 s31, 0")
    WU = VB
    a(f"s_lshl_b32 s29, s3, 8"); a(f"v_lshl_add_u32 {v(t1)}, {v(t2)}, 3, s29")
    a(f"v_bfe_u32 {v(t3)}, v0, 2, 1"); a("s_lshl_b32 s34, s3, 4"); a("s_add_u32 s29, s29, s34"); a(f"v_lshl_add_u32 {v(t3)}, {v(t3)}, 7, s29")
    a.label(f"{name}_p2")
    a(f"global_load_dwordx4 {v(ML,4)}, {v(aML)}, s[46:47] sc1")
    a("s_cmp_eq_u32 s31, 1"); a(f"s_cbranch_scc1 {name}_p2m")
    for i in range(4):
        a(f"global_load_dwordx4 {v(OO+4*i,4)}, {v(aO)}, s[46:47] offset:{1024*i} sc1")
    a("s_waitcnt vmcnt(0)")
    a(f"v_max3_u32 {v(vx)}, {v(OO)}, {v(OO+1)}, {v(OO+2)}"); a(f"v_max3_u32 {v(vx+1)}, {v(OO+3)}, {v(OO+4)}, {v(OO+5)}")
    for i in range(6, 14, 4):
        a(f"v_max3_u32 {v(vx)}, {v(vx)}, {v(OO+i)}, {v(OO+i+1)}"); a(f"v_max3_u32 {v(vx+1)}, {v(vx+1)}, {v(OO+i+2)}, {v(OO+i+3)}")
    a(f"v_max3_u32 {v(vx)}, {v(vx)}, {v(OO+14)}, {v(OO+15)}"); a(f"v_max_u32 {v(vx)}, {v(vx)}, {v(vx+1)}")
    a(f"v_cmp_eq_u32 vcc, -1, {v(vx)}")
    a("s_cmp_eq_u64 vcc, 0"); a("s_cselect_b32 s31, 1, 0")
    a.label(f"{name}_p2m")
    a("s_add_u32 s30, s30, 1")
    a("s_waitcnt vmcnt(0)")
    a(f"v_max3_u32 {v(vx)}, {v(ML)}, {v(ML+1)}, {v(ML+2)}"); a(f"v_max_u32 {v(vx)}, {v(vx)}, {v(ML+3)}")
    a(f"v_cmp_eq_u32 vcc, -1, {v(vx)}")
    a(f"s_cmp_gt_u32 s30, {SPIN_MAX}"); a(f"s_cbranch_scc1 {name}_p2d")
    a(f"s_cbranch_vccnz {name}_p2s")
    a("s_cmp_eq_u32 s31, 1"); a(f"s_cbranch_scc1 {name}_p2d")
    a.label(f"{name}_p2s")
    if ps2: a(f"s_sleep {ps2}")
    a(f"s_branch {name}_p2")
    a.label(f"{name}_p2d")
    stamp()
    a(f"v_max_f32 {v(t0)}, {v(ML)}, {v(ML+2)}")
    allreduce(a, "v_max_f32", t0, tm, lanes=16)
    a(f"v_sub_f32 {v(vx)}, {v(ML)}, {v(t0)}"); a(f"v_sub_f32 {v(vx+1)}, {v(ML+2)}, {v(t0)}")
    a(f"v_exp_f32 {v(vx)}, {v(vx)}"); a(f"v_exp_f32 {v(vx+1)}, {v(vx+1)}")
    a(f"ds_write_b64 {v(t1)}, {v(vx,2)} offset:{LDS_C}")
    a(f"v_mul_f32 {v(t0)}, {v(vx)}, {v(ML+1)}"); a(f"v_fmac_f32 {v(t0)}, {v(vx+1)}, {v(ML+3)}")
    a("s_waitcnt lgkmcnt(0)")
    a(f"ds_read_b128 {v(CW,4)}, {v(t3)} offset:{LDS_C}")
    allreduce(a, "v_add_f32", t0, tm, lanes=16)
    a(f"v_rcp_f32 {v(t0)}, {v(t0)}")
    a("s_lshl_b32 s34, s3, 10"); a(f"v_lshl_add_u32 {v(t1)}, v0, 4, s34")
    a(f"v_lshrrev_b32 {v(t3)}, 2, v0"); a("s_lshl_b32 s34, s3, 7"); a(f"v_lshl_add_u32 {v(t3)}, {v(t3)}, 2, s34")
    a(f"v_readlane_b32 s4, {v(t0)}, 0"); a(f"v_readlane_b32 s5, {v(t0)}, 16")
    a("s_waitcnt lgkmcnt(0)")
    for k in range(4):
        for c in range(4):
            op = "v_mul_f32" if k == 0 else "v_fmac_f32"
            a(f"{op} {v(ACC+c)}, {v(CW+k)}, {v(OO+4*k+c)}")
    a(f"ds_write_b128 {v(t1)}, {v(ACC,4)} offset:{LDS_R1}")
    for c in range(8): unpack(a, WU+2*c, WU+2*c+1, WO+c)
    a(f"v_add_u32 {v(t0)}, 64, {v(t3)}")
    a(f"v_and_b32 {v(t1)}, 3, v0"); a(f"v_lshrrev_b32 {v(tm)}, 4, v0"); a(f"v_lshlrev_b32 {v(t1)}, 5, {v(t1)}"); a(f"v_lshl_add_u32 {v(t1)}, {v(tm)}, 3, {v(t1)}")
    a(f"v_add_u32 {v(t1)}, s34, {v(t1)}")
    a("s_waitcnt lgkmcnt(0)"); a("s_barrier")
    b0 = LDS_R1 // 256
    for k in range(4): a(f"ds_read2st64_b32 {v(U+2*k,2)}, {v(t3)} offset0:{b0+8*k} offset1:{b0+8*k+4}")
    for k in range(4): a(f"ds_read2st64_b32 {v(U+8+2*k,2)}, {v(t0)} offset0:{b0+8*k} offset1:{b0+8*k+4}")
    a(f"v_lshlrev_b32 {v(t2)}, 2, v0")
    a("s_lshl_b32 s29, s20, 12"); a("s_lshl_b32 s30, s33, 11"); a("s_add_u32 s29, s29, s30"); a("s_lshr_b32 s30, s21, 1"); a("s_lshl_b32 s30, s30, 7")
    a("s_add_u32 s29, s29, s30"); a(f"s_add_u32 s29, s29, {WS_YP}")
    if rep8:
        a(f"v_lshrrev_b32 {v(t3)}, 3, v0"); a(f"v_lshlrev_b32 {v(t3)}, 15, {v(t3)}"); a(f"v_and_b32 {v(t2)}, 7, v0"); a(f"v_lshlrev_b32 {v(t2)}, 4, {v(t2)}")
        a(f"v_add3_u32 {v(t3)}, {v(t3)}, {v(t2)}, s29")
    else: a(f"v_add_u32 {v(t3)}, s29, {v(t2)}")
    a("s_mov_b32 s6, 0x000f000f"); a("s_mov_b32 s7, 0x000f000f")
    a("s_waitcnt lgkmcnt(4)")
    for k in range(4): a(f"v_add_f32 {v(U+2*k)}, {v(U+2*k)}, {v(U+2*k+1)}")
    a(f"v_add_f32 {v(U)}, {v(U)}, {v(U+2)}"); a(f"v_add_f32 {v(U+4)}, {v(U+4)}, {v(U+6)}")
    a("s_waitcnt lgkmcnt(0)")
    for k in range(4): a(f"v_add_f32 {v(U+8+2*k)}, {v(U+8+2*k)}, {v(U+8+2*k+1)}")
    a(f"v_add_f32 {v(U+8)}, {v(U+8)}, {v(U+10)}"); a(f"v_add_f32 {v(U+12)}, {v(U+12)}, {v(U+14)}")
    a(f"v_add_f32 {v(U)}, {v(U)}, {v(U+4)}"); a(f"v_add_f32 {v(U+1)}, {v(U+8)}, {v(U+12)}")
    a(f"v_mul_f32 {v(U)}, s4, {v(U)}"); a(f"v_mul_f32 {v(U+1)}, s5, {v(U+1)}")
    rne2(a, U, U+1, U, U+1, t0)
    for c in range(8): a(f"v_mul_f32 {v(WU+c)}, {v(U)}, {v(WU+c)}")
    for c in range(8): a(f"v_fmac_f32 {v(WU+c)}, {v(U+1)}, {v(WU+8+c)}")
    fold8(WU)
    a("s_mov_b64 exec, s[6:7]")
    a(f"ds_write_b64 {v(t1)}, {v(WU,2)} offset:{LDS_R2}")
    a("s_mov_b64 exec, -1")
    a("s_waitcnt lgkmcnt(0)"); a("s_barrier")
    a("s_cmp_lg_u32 s3, 0"); a(f"s_cbranch_scc1 {name}_s3")
    if rep8:
        for w_ in range(8): a(f"ds_read_b128 {v(KB+4*w_,4)}, {v(t2)} offset:{LDS_R2+128*w_}")
        for w_ in range(4):
            a(f"s_waitcnt lgkmcnt({6-2*w_})")
            for c in range(0, 4, 2): a(f"v_pk_add_f32 {v(KB+8*w_+c,2)}, {v(KB+8*w_+c,2)}, {v(KB+8*w_+4+c,2)}")
        for c in range(0, 4, 2): a(f"v_pk_add_f32 {v(KB+c,2)}, {v(KB+c,2)}, {v(KB+8+c,2)}")
        for c in range(0, 4, 2): a(f"v_pk_add_f32 {v(KB+16+c,2)}, {v(KB+16+c,2)}, {v(KB+24+c,2)}")
        for c in range(0, 4, 2): a(f"v_pk_add_f32 {v(KB+c,2)}, {v(KB+c,2)}, {v(KB+16+c,2)}")
        for c in range(4): a(f"v_min_u32 {v(KB+c)}, -2, {v(KB+c)}")
        a(f"global_store_dwordx4 {v(t3)}, {v(KB,4)}, s[46:47] sc1")
    else:
        a(f"ds_read2st64_b32 {v(U,2)}, {v(t2)} offset0:{LDS_R2//256} offset1:{LDS_R2//256+1}")
        a(f"ds_read2st64_b32 {v(U+2,2)}, {v(t2)} offset0:{LDS_R2//256+2} offset1:{LDS_R2//256+3}")
        a("s_waitcnt lgkmcnt(0)")
        a(f"v_add_f32 {v(U)}, {v(U)}, {v(U+1)}"); a(f"v_add_f32 {v(U+2)}, {v(U+2)}, {v(U+3)}"); a(f"v_add_f32 {v(U)}, {v(U)}, {v(U+2)}")
        a(f"v_mov_b32 {v(tm)}, {v(U)}"); a(f"v_permlane32_swap_b32 {v(U)}, {v(tm)}"); a(f"v_add_f32 {v(U)}, {v(U)}, {v(tm)}")
        a(f"v_min_u32 {v(U)}, -2, {v(U)}")
        a("s_mov_b32 exec_hi, 0")
        a(f"global_store_dword {v(t3)}, {v(U)}, s[46:47] sc1")
        a("s_mov_b64 exec, -1")
    a.fence()
    a.label(f"{name}_s3")
    stamp()
    Y = KA; AY = KB
    if rep8:
        a("s_and_b32 s29, s63, 7"); a("s_lshl_b32 s29, s29, 15"); a(f"v_add_u32 {v(t0)}, s29, {v(al)}")
    for i in range(8): a(f"v_add_u32 {v(AY+i)}, {WS_YP + 0x1000*i}, {v(t0 if rep8 else al)}")
    W1u = [VA, VA+2]; B1u = [VA+4, VA+6]; CC0 = VA+8; ONE = VA+10
    for k in range(2):
        unpack(a, W1u[k], W1u[k]+1, W1+k); unpack(a, B1u[k], B1u[k]+1, B1+k)
    c0 = -2.0 * LOG2E * 0.7978845608028654; c1 = c0 * 0.044715
    a(f"v_mov_b32 {v(CC0)}, {f32hex(c0)}"); a(f"v_mov_b32 {v(CC0+1)}, {f32hex(c0)}"); a(f"v_mov_b32 {v(ONE)}, 1.0"); a(f"v_mov_b32 {v(ONE+1)}, 1.0")
    a(f"s_mov_b32 s4, {f32hex(c1)}"); a(f"s_mov_b32 s5, {f32hex(c1)}")
    a("s_cmp_lt_u32 s3, 6"); a(f"s_cbranch_scc1 {name}_w2ok")
    a(f"v_mov_b32 {v(W2+1)}, 0")
    a.label(f"{name}_w2ok")
    a(f"v_lshlrev_b32 {v(XR)}, 16, {v(XR)}")
    a("s_mov_b32 s30, 0"); a("s_mov_b32 s31, 0")
    vx = KA + 16
    if p3x:
        MK = 80
        for i in range(8): a(f"s_mov_b64 s[{MK+2*i}:{MK+2*i+1}], -1")
        a.label(f"{name}_p3")
        for i in range(8):
            a(f"s_mov_b64 exec, s[{MK+2*i}:{MK+2*i+1}]")
            a(f"global_load_dword {v(Y+2*i)}, {v(AY+i)}, s[46:47] sc1")
            a(f"global_load_dword {v(Y+2*i+1)}, {v(AY+i)}, s[46:47] offset:2048 sc1")
        a("s_mov_b64 exec, -1")
        a("s_add_u32 s30, s30, 1")
        for i in range(8):
            a(f"s_waitcnt vmcnt({14-2*i})")
            a(f"v_max_u32 {v(vx+i)}, {v(Y+2*i)}, {v(Y+2*i+1)}")
            a(f"v_cmp_eq_u32 s[{MK+2*i}:{MK+2*i+1}], -1, {v(vx+i)}")
            if i == 1: a(f"s_or_b64 s[34:35], s[{MK}:{MK+1}], s[{MK+2}:{MK+3}]")
            if i > 1: a(f"s_or_b64 s[34:35], s[34:35], s[{MK+2*i}:{MK+2*i+1}]")
        a(f"s_cbranch_scc0 {name}_p3d")
        a(f"s_cmp_gt_u32 s30, {SPIN_MAX}"); a(f"s_cbranch_scc0 {name}_p3")
    else:
        a.label(f"{name}_p3")
        for i in range(8):
            a(f"s_bitcmp1_b32 s31, {i}"); a(f"s_cbranch_scc1 {name}_p3k{i}")
            a(f"global_load_dword {v(Y+2*i)}, {v(AY+i)}, s[46:47] sc1")
            a(f"global_load_dword {v(Y+2*i+1)}, {v(AY+i)}, s[46:47] offset:2048 sc1")
            a.label(f"{name}_p3k{i}")
        a("s_add_u32 s30, s30, 1")
        a("s_waitcnt vmcnt(0)")
        for i in range(8): a(f"v_max_u32 {v(vx+i)}, {v(Y+2*i)}, {v(Y+2*i+1)}")
        a(f"v_max3_u32 {v(vx+8)}, {v(vx)}, {v(vx+1)}, {v(vx+2)}"); a(f"v_max3_u32 {v(vx+9)}, {v(vx+3)}, {v(vx+4)}, {v(vx+5)}")
        a(f"v_max3_u32 {v(vx+8)}, {v(vx+8)}, {v(vx+6)}, {v(vx+7)}"); a(f"v_max_u32 {v(vx+8)}, {v(vx+8)}, {v(vx+9)}")
        a(f"v_cmp_eq_u32 vcc, -1, {v(vx+8)}")
        a(f"s_cbranch_vccz {name}_p3d")
        a(f"s_cmp_gt_u32 s30, {SPIN_MAX}"); a(f"s_cbranch_scc1 {name}_p3d")
        for i in range(8):
            a(f"v_cmp_eq_u32 vcc, -1, {v(vx+i)}")
            a("s_cmp_eq_u64 vcc, 0"); a(f"s_cselect_b32 s34, {1<<i}, 0"); a("s_or_b32 s31, s31, s34")
        if ps3: a(f"s_sleep {ps3}")
        a(f"s_branch {name}_p3")
    a.label(f"{name}_p3d")
    stamp()
    for k in range(8): a(f"v_add_f32 {v(Y+2*k)}, {v(Y+2*k)}, {v(Y+2*k+1)}")
    for k in range(4): a(f"v_add_f32 {v(Y+4*k)}, {v(Y+4*k)}, {v(Y+4*k+2)}")
    a(f"v_add_f32 {v(Y)}, {v(Y)}, {v(Y+4)}"); a(f"v_add_f32 {v(Y+8)}, {v(Y+8)}, {v(Y+12)}"); a(f"v_add_f32 {v(Y)}, {v(Y)}, {v(Y+8)}")
    rne1(a, Y, Y, t1)
    a(f"v_add_f32 {v(Y)}, {v(Y)}, {v(XR)}")
    rne1(a, Y, Y, t1)
    a(f"ds_write_b32 {v(al)}, {v(Y)} offset:{LDS_H}")
    a(f"v_lshlrev_b32 {v(t2)}, 4, v0")
    a("s_lshl_b32 s29, s2, 3"); a(f"v_mov_b32 {v(t1)}, s29")
    Y = VB
    X = [Y+8+i for i in range(8)]; mb, sq, rc = Y+16, Y+17, Y+18; PK = Y+20; HP = Y+24; HH = Y+26
    a("s_waitcnt lgkmcnt(0)"); a("s_barrier")
    a("s_cmp_lg_u32 s3, 0"); a(f"s_cbranch_scc1 {name}_lnw")
    a(f"ds_read_b128 {v(X[0],4)}, {v(t2)} offset:{LDS_H}"); a(f"ds_read_b128 {v(X[4],4)}, {v(t2)} offset:{LDS_H+1024}")
    a(f"ds_read_b64 {v(HH,2)}, {v(t1)} offset:{LDS_H}")
    a("s_waitcnt lgkmcnt(0)")
    if fine: stamp()
    def stats():
        if fastln: ln_stats_fast(a, X, mb, sq, rc, t0, t1, t2, t3, KB, 32)
        else: ln_stats(a, X, mb, sq, rc, t0, t1, t2)
    stats()
    TA = [KA + 4*i for i in range(5)]
    assert mb % 2 == 0 and rc % 2 == 0
    srcs = [X[2*i] for i in range(4)] + [HH]
    for xs, tb in zip(srcs, TA): a(f"v_pk_add_f32 {v(tb,2)}, {v(xs,2)}, {v(mb,2)} op_sel_hi:[1,0] neg_lo:[0,1] neg_hi:[0,1]")
    for tb in TA: a(f"v_cvt_pk_bf16_f32 {v(tb+2)}, {v(tb)}, {v(tb+1)}")
    for tb in TA: unpack(a, tb, tb+1, tb+2)
    for tb in TA: a(f"v_pk_mul_f32 {v(tb+2,2)}, {v(tb,2)}, {v(rc,2)} op_sel_hi:[1,0]")
    tb = TA[4]
    a(f"v_fma_f32 {v(tb)}, -{v(tb+2)}, {v(sq)}, {v(tb)}"); a(f"v_fma_f32 {v(tb+1)}, -{v(tb+3)}, {v(sq)}, {v(tb+1)}")
    for t_ in TA[:4]: a(f"v_cvt_pk_bf16_f32 {v(t_)}, {v(t_+2)}, {v(t_+3)}")
    a(f"v_fmac_f32 {v(tb+2)}, {v(tb)}, {v(rc)}"); a(f"v_fmac_f32 {v(tb+3)}, {v(tb+1)}, {v(rc)}")
    for i in range(4): unpack(a, X[2*i], X[2*i+1], TA[i])
    a(f"v_cvt_pk_bf16_f32 {v(tb)}, {v(tb+2)}, {v(tb+3)}")
    unpack(a, HP, HP+1, tb)
    stats()
    ln_pair(a, HP, HP+1, mb, sq, rc, PK, t0, t1, t2, t3)
    a(f"v_mov_b32 {v(t0)}, 0")
    a(f"ds_write_b32 {v(t0)}, {v(PK)} offset:{LDS_FL}")
    a("s_waitcnt lgkmcnt(0)")
    a.label(f"{name}_lnw")
    if fine: nst[0] -= 1; stamp()
    a(f"v_mov_b32 {v(t0)}, 0")
    a("s_barrier")
    a(f"ds_read_b32 {v(PK)}, {v(t0)} offset:{LDS_FL}")
    a("s_waitcnt lgkmcnt(0)")
    unpack(a, HP, HP+1, PK)
    if fine: stamp()
    u = [VA+12+i for i in range(8)]; w = [VA+20+i for i in range(8)]; z = [VA+28, VA+29]; tc = [KA+i for i in range(4)]
    units = [(k, ch) for k in range(2) for ch in range(2)]
    def each(fn):
        for i, (k, ch) in enumerate(units): fn(u[2*i], w[2*i], tc[i], k, ch)
    def rn(U, W_, t, k, ch):
        a(f"v_cvt_pk_bf16_f32 {v(t)}, {v(U)}, {v(U+1)}")
    each(lambda U, W_, t, k, ch: a(f"v_pk_mul_f32 {v(U,2)}, {v(W1u[k],2)}, {v(HP,2)} op_sel:[0,{ch}] op_sel_hi:[1,{ch}]"))
    each(rn); each(lambda U, W_, t, k, ch: unpack(a, U, U+1, t))
    each(lambda U, W_, t, k, ch: a(f"v_pk_add_f32 {v(U,2)}, {v(U,2)}, {v(B1u[k],2)}"))
    each(rn); each(lambda U, W_, t, k, ch: unpack(a, U, U+1, t))
    each(lambda U, W_, t, k, ch: a(f"v_pk_mul_f32 {v(W_,2)}, {v(U,2)}, {v(U,2)}"))
    each(lambda U, W_, t, k, ch: a(f"v_pk_fma_f32 {v(W_,2)}, {v(W_,2)}, s[4:5], {v(CC0,2)}"))
    each(lambda U, W_, t, k, ch: a(f"v_pk_mul_f32 {v(W_,2)}, {v(W_,2)}, {v(U,2)}"))
    for i in range(8): a(f"v_exp_f32 {v(w[i])}, {v(w[i])}")
    each(lambda U, W_, t, k, ch: a(f"v_pk_add_f32 {v(W_,2)}, {v(W_,2)}, {v(ONE,2)}"))
    for i in range(8): a(f"v_rcp_f32 {v(w[i])}, {v(w[i])}")
    each(lambda U, W_, t, k, ch: a(f"v_pk_mul_f32 {v(U,2)}, {v(U,2)}, {v(W_,2)}"))
    each(rn)
    each(lambda U, W_, t, k, ch: a(f"v_dot2_f32_bf16 {v(z[ch])}, {v(t)}, {v(W2+k)}, {'0' if k == 0 else v(z[ch])}"))
    a(f"v_permlane32_swap_b32 {v(z[0])}, {v(z[1])}"); a(f"v_add_f32 {v(z[0])}, {v(z[0])}, {v(z[1])}")
    allreduce(a, "v_add_f32", z[0], t0, lanes=32)
    if fine: stamp()
    a("s_lshl_b32 s29, s3, 2"); a(f"v_add_u32 {v(t0)}, s29, v0")
    a("s_mov_b32 s6, 1"); a("s_mov_b32 s7, 1")
    a(f"v_and_b32 {v(t1)}, 32, v0")
    a("s_mov_b64 exec, s[6:7]")
    a(f"ds_write_b32 {v(t0)}, {v(z[0])} offset:{LDS_FR}")
    a("s_mov_b64 exec, -1")
    a(f"v_cmp_ne_u32 vcc, 0, {v(t1)}")
    a(f"v_cndmask_b32 {v(HH)}, {v(HH)}, {v(HH+1)}, vcc")
    a(f"v_lshrrev_b32 {v(t2)}, 4, {v(t1)}"); a("s_lshl_b32 s29, s2, 2"); a(f"v_add_u32 {v(t2)}, s29, {v(t2)}")
    a("s_waitcnt lgkmcnt(0)"); a("s_barrier")
    a("s_cmp_lg_u32 s3, 0"); a(f"s_cbranch_scc1 {name}_fin")
    a(f"ds_read_b128 {v(u[0],4)}, {v(t1)} offset:{LDS_FR}"); a(f"ds_read_b128 {v(u[4],4)}, {v(t1)} offset:{LDS_FR+16}")
    a(f"v_mov_b32 {v(t0)}, 0"); a(f"v_mov_b32 {v(t1)}, s61")
    a("s_waitcnt lgkmcnt(0)")
    for i in range(4): a(f"v_add_f32 {v(u[i])}, {v(u[i])}, {v(u[4+i])}")
    a(f"v_add_f32 {v(u[0])}, {v(u[0])}, {v(u[1])}"); a(f"v_add_f32 {v(u[2])}, {v(u[2])}, {v(u[3])}"); a(f"v_add_f32 {v(z[0])}, {v(u[0])}, {v(u[2])}")
    rne1(a, z[0], z[0], t3)
    a(f"v_add_f32 {v(z[0])}, s60, {v(z[0])}")
    rne1(a, z[0], z[0], t3)
    a(f"v_add_f32 {v(z[0])}, {v(z[0])}, {v(HH)}")
    a(f"v_cvt_pk_bf16_f32 {v(z[0])}, {v(z[0])}, {v(z[0])}")
    a("s_mov_b64 exec, s[6:7]")
    a(f"global_store_short {v(t2)}, {v(z[0])}, s[50:51]")
    a("s_cmp_lg_u32 s2, 0"); a(f"s_cbranch_scc1 {name}_fin")
    a("s_mov_b64 exec, 1")
    a(f"global_store_dword {v(t0)}, {v(t1)}, s[46:47] offset:{WS_EP}")
    a.label(f"{name}_fin")
    if fine: stamp()
    if stamps:
        a("s_mov_b64 exec, 1")
        a("s_waitcnt vmcnt(0)")
        stamp()
        a.label(f"{name}_fin2")
        a("s_mov_b64 exec, 1")
        a("s_waitcnt lgkmcnt(0)")
        assert nst[0] <= 16
        a("s_lshl_b32 s29, s2, 3"); a("s_add_u32 s29, s29, s3"); a("s_lshl_b32 s29, s29, 7"); a(f"s_add_u32 s29, s29, {WS_STAMP}")
        a(f"v_mov_b32 {v(tm)}, s29")
        n = (nst[0] + 1) // 2
        if dbgst:
            a("s_load_dwordx2 s[44:45], s[0:1], 88")
            a("s_not_b32 s29, s64")
            a(f"v_mov_b32 {v(T)}, s29")
            for i in range(nst[0]): a(f"v_writelane_b32 {v(T)}, s{64+2*i}, {i+1}")
            a(f"s_mov_b64 exec, {hex((1 << (nst[0]+1)) - 1)}")
            a(f"v_lshlrev_b32 {v(T+1)}, 2, v0")
            a("s_waitcnt lgkmcnt(0)")
            a(f"global_atomic_umax {v(T+1)}, {v(T)}, s[44:45]")
            a("s_endpgm")
        for i in range(4*n): a(f"v_mov_b32 {v(T+i)}, s{64+i}")
        for i in range(n): a(f"global_store_dwordx4 {v(tm)}, {v(T+4*i,4)}, s[46:47] offset:{16*i}")
    a.label(f"{name}_end"); a("s_endpgm")
    a.label(f"{name}_w0")
    nst_end = nst[0]; nst[0] = nst_save
    if bare:
        a("s_mov_b32 s22, 0"); kv_setup(); loadK(KA); loadV(VA); a("s_barrier"); late_setup(); a("s_waitcnt vmcnt(0)"); stamp(); stamp(); nst[0] -= 2
        a("s_barrier"); init_state(); a(f"s_branch {name}_join")
    if prio: a("s_setprio 3")
    W = KB; X = [M+i for i in range(8)]; xr = M + 8; vo = M + 12; mb, sq, rc = M+13, M+14, M+15
    t0, t1, t2, t3 = T, T+1, T+2, T+3
    CL = O
    a(f"v_lshrrev_b32 {v(t0)}, 2, v0"); a(f"v_and_b32 {v(t1)}, 3, v0"); a(f"v_lshlrev_b32 {v(t2)}, 6, {v(t0)}"); a(f"v_lshl_add_u32 {v(t2)}, {v(t1)}, 3, {v(t2)}")
    a(f"v_lshlrev_b32 {v(vo)}, 13, {v(t0)}"); a(f"v_lshl_add_u32 {v(vo)}, {v(t1)}, 4, {v(vo)}")
    a("s_and_b32 s31, s21, 1"); a("s_lshr_b32 s34, s21, 1")
    a("s_lshl_b32 s32, s20, 10"); a(f"s_xor_b32 s33, s34, {qx}"); a("s_lshl_b32 s33, s33, 6"); a("s_add_u32 s32, s32, s33"); a("s_lshl_b32 s33, s31, 21"); a("s_add_u32 s32, s32, s33")
    a("s_mov_b32 s18, 0x400000"); a("s_mov_b32 s19, 0x20000")
    a("s_waitcnt lgkmcnt(0)")
    a(f"global_load_dwordx2 {v(xr,2)}, {v(t2)}, s[36:37]"); a(f"global_load_dwordx2 {v(xr+2,2)}, {v(t2)}, s[36:37] offset:32")
    a("s_mov_b32 s16, s42"); a("s_mov_b32 s17, s43")
    for i in range(16):
        if noq == 2: a(f"buffer_load_dwordx4 {v(W+4*i,4)}, {v(vo)}, s[16:19], s19 offen offset:4000") if False else a(f"global_load_dword {v(W+4*i)}, {v(t2)}, s[36:37]")
        else: a(f"buffer_load_dwordx4 {v(W+4*i,4)}, {v(vo)}, s[16:19], s32 offen {qpol}")
        if i < 15: a("s_add_u32 s32, s32, 0x20000")
    for i in range(4): a(f"v_mov_b32 {v(CL+i)}, -1")
    a("s_lshl_b32 s29, s20, 16"); a("s_lshl_b32 s30, s21, 10"); a("s_add_u32 s29, s29, s30"); a(f"s_add_u32 s29, s29, {WS_OP}")
    a(f"v_lshl_add_u32 {v(CL+4)}, v0, 4, s29"); a(f"v_add_u32 {v(CL+5)}, 0x8000, {v(CL+4)}")
    a("s_lshl_b32 s29, s20, 10"); a("s_lshl_b32 s30, s21, 3"); a("s_add_u32 s29, s29, s30"); a(f"s_add_u32 s29, s29, {WS_ML}")
    a(f"v_lshl_add_u32 {v(CL+6)}, v0, 8, s29")
    a("s_lshl_b32 s29, s20, 12"); a("s_lshl_b32 s30, s31, 11"); a("s_add_u32 s29, s29, s30"); a("s_lshl_b32 s30, s34, 7"); a("s_add_u32 s29, s29, s30")
    a(f"s_add_u32 s29, s29, {WS_YP}")
    if rep8:
        a(f"v_lshrrev_b32 {v(CL+7)}, 3, v0"); a(f"v_lshlrev_b32 {v(CL+7)}, 15, {v(CL+7)}"); a(f"v_and_b32 {v(CL+8)}, 7, v0"); a(f"v_lshlrev_b32 {v(CL+8)}, 4, {v(CL+8)}")
        a(f"v_add3_u32 {v(CL+7)}, {v(CL+7)}, {v(CL+8)}, s29")
    else: a(f"v_lshl_add_u32 {v(CL+7)}, v0, 4, s29")
    a(f"global_load_dword {v(CL+20)}, {v(t2)}, s[36:37]" if noclr else f"global_store_dwordx4 {v(CL+4)}, {v(CL,4)}, s[46:47] sc1")
    a(f"global_load_dword {v(CL+20)}, {v(t2)}, s[36:37]" if noclr else f"global_store_dwordx4 {v(CL+5)}, {v(CL,4)}, s[46:47] sc1")
    a("s_mov_b64 exec, 0xf")
    a(f"global_load_dword {v(CL+20)}, {v(t2)}, s[36:37]" if noclr else f"global_store_dwordx2 {v(CL+6)}, {v(CL,2)}, s[46:47] sc1")
    a("s_mov_b64 exec, -1" if rep8 else "s_mov_b64 exec, 0xff")
    a(f"global_load_dword {v(CL+20)}, {v(t2)}, s[36:37]" if noclr else f"global_store_dwordx4 {v(CL+7)}, {v(CL,4)}, s[46:47] sc1")
    a("s_mov_b64 exec, -1")
    a("s_mov_b32 s22, 0")
    kv_setup()
    loadK(KA); loadV(VA)
    a("s_barrier")
    late_setup()
    a(f"v_lshrrev_b32 {v(t2)}, 3, {v(t0)}"); a(f"v_lshlrev_b32 {v(vo)}, 9, {v(t2)}"); a(f"v_lshl_add_u32 {v(vo)}, {v(t1)}, 7, {v(vo)}")
    a(f"v_and_b32 {v(t2)}, 7, {v(t0)}"); a(f"v_lshl_add_u32 {v(vo)}, {v(t2)}, 2, {v(vo)}")
    RA = CL + 8
    a("s_lshl_b32 s29, s31, 9"); a(f"v_lshl_add_u32 {v(RA)}, {v(t0)}, 5, s29")
    GS = CL + 9
    a(f"v_lshrrev_b32 {v(t2)}, 4, v0"); a(f"v_lshlrev_b32 {v(GS)}, 6, {v(t1)}"); a(f"v_lshl_add_u32 {v(GS)}, {v(t2)}, 4, {v(GS)}")
    a("s_lshl_b32 s29, s20, 13"); a(f"s_add_u32 s29, s29, {WS_QG}"); a("s_lshl_b32 s30, s31, 12"); a("s_add_u32 s30, s30, s29"); a("s_lshl_b32 s33, s34, 8"); a("s_add_u32 s30, s30, s33")
    a(f"v_add_u32 {v(GS)}, s30, {v(GS)}")
    GL = CL + 10
    a(f"v_lshl_add_u32 {v(GL)}, v0, 4, s29"); a(f"v_add_u32 {v(GL+1)}, 0x1000, {v(GL)}")
    a("s_lshl_b32 s30, s20, 8"); a(f"v_and_b32 {v(t2)}, 31, v0"); a(f"v_lshl_add_u32 {v(GL+2)}, {v(t2)}, 3, s30")
    a("s_lshl_b32 s33, s21, 3"); a("s_add_u32 s33, s33, s30"); a(f"v_mov_b32 {v(GL+3)}, s33")
    a("s_waitcnt vmcnt(36)")
    for i in range(4): unpack(a, X[2*i], X[2*i+1], xr + i)
    ln_stats(a, X, mb, sq, rc, t0, t1, t2)
    for e in range(4):
        ln_pair(a, X[e], X[e+4], mb, sq, rc, xr + e, t0, t1, t2, t3)
        a(f"ds_write_b32 {v(vo)}, {v(xr+e)} offset:{LDS_XN + 32*e}")
    a("s_waitcnt lgkmcnt(0)")
    a(f"ds_read_b128 {v(X[0],4)}, {v(RA)} offset:{LDS_XN}"); a(f"ds_read_b128 {v(X[4],4)}, {v(RA)} offset:{LDS_XN+16}")
    AC = CL + 16
    for c in range(8): a(f"v_mov_b32 {v(AC+c)}, 0")
    a("s_add_u32 s62, s61, 0x9e3779b9")
    GD = CL + 24
    a(f"v_mov_b32 {v(GD+1)}, s62"); a(f"v_mov_b32 {v(GD+3)}, s62"); a(f"v_mov_b32 {v(GD+4)}, s63"); a(f"v_mov_b32 {v(GD+5)}, s62")
    a("s_waitcnt lgkmcnt(0)")
    for p in range(8):
        a(f"s_waitcnt vmcnt({20 + 14 - 2*p})")
        for cc in range(4):
            a(f"v_perm_b32 {v(T+2*cc)}, {v(W+8*p+4+cc)}, {v(W+8*p+cc)}, s25")
            a(f"v_perm_b32 {v(T+2*cc+1)}, {v(W+8*p+4+cc)}, {v(W+8*p+cc)}, s26")
        for c in range(8): a(f"v_dot2_f32_bf16 {v(AC+c)}, {v(T+c)}, {v(X[p])}, {v(AC+c)}")
    a.nop(3)
    fold8(AC)
    a(f"v_mov_b32 {v(GD)}, {v(AC)}"); a(f"v_mov_b32 {v(GD+2)}, {v(AC+1)}")
    a("s_mov_b32 s4, 0x000f000f"); a("s_mov_b32 s5, 0x000f000f")
    a("s_waitcnt vmcnt(16)")
    a("s_mov_b64 exec, s[4:5]")
    a(f"global_store_dwordx4 {v(GS)}, {v(GD,4)}, s[46:47] sc1")
    a("s_mov_b64 exec, 1")
    a(f"global_store_dwordx2 {v(GL+3)}, {v(GD+4,2)}, s[46:47] offset:{WS_XG} sc1")
    a("s_mov_b64 exec, -1")
    stamp()
    a("s_mov_b32 s30, 0"); a("s_mov_b32 s31, 0")
    GA = KB
    if xgfirst:
        a.label(f"{name}_pollx")
        a(f"global_load_dwordx2 {v(GA+32,2)}, {v(GL+2)}, s[46:47] offset:{WS_XG} sc1")
        a("s_add_u32 s30, s30, 1")
        a("s_waitcnt vmcnt(0)")
        a(f"v_cmp_ne_u32 vcc, s62, {v(GA+33)}")
        a(f"s_cbranch_vccz {name}_poll")
        a(f"s_cmp_gt_u32 s30, {SPIN_MAX}"); a(f"s_cbranch_scc1 {name}_polled")
        if qsleep: a(f"s_sleep {qsleep}")
        a(f"s_branch {name}_pollx")
        a.label(f"{name}_poll")
        for i in range(8):
            a(f"global_load_dwordx4 {v(GA+4*i,4)}, {v(GL + (i >> 2))}, s[46:47] offset:{1024*(i&3)} sc1")
        a("s_add_u32 s30, s30, 1")
        a("s_waitcnt vmcnt(0)")
        for i in range(16): a(f"v_xor_b32 {v(GA+2*i+1)}, s62, {v(GA+2*i+1)}")
        for i in range(0, 16, 4):
            a(f"v_or3_b32 {v(GA+2*i+1)}, {v(GA+2*i+1)}, {v(GA+2*i+3)}, {v(GA+2*i+5)}"); a(f"v_or_b32 {v(GA+2*i+1)}, {v(GA+2*i+1)}, {v(GA+2*i+7)}")
        a(f"v_or3_b32 {v(GA+1)}, {v(GA+1)}, {v(GA+9)}, {v(GA+17)}"); a(f"v_or_b32 {v(GA+1)}, {v(GA+1)}, {v(GA+25)}")
        a(f"v_cmp_ne_u32 vcc, 0, {v(GA+1)}")
        a(f"s_cmp_gt_u32 s30, {SPIN_MAX}"); a(f"s_cbranch_scc1 {name}_polled")
        a(f"s_cbranch_vccnz {name}_poll")
    else:
        if noq: a(f"s_branch {name}_polled")
        a.label(f"{name}_poll")
        if qdelay: a(f"s_sleep {qdelay}")
        for i in range(8):
            a(f"s_bitcmp1_b32 s31, {i}"); a(f"s_cbranch_scc1 {name}_qk{i}")
            a(f"global_load_dwordx4 {v(GA+4*i,4)}, {v(GL + (i >> 2))}, s[46:47] offset:{1024*(i&3)} sc1")
            a.label(f"{name}_qk{i}")
        if not xglast: a(f"global_load_dwordx2 {v(GA+32,2)}, {v(GL+2)}, s[46:47] offset:{WS_XG} sc1")
        a("s_add_u32 s30, s30, 1")
        a("s_waitcnt vmcnt(0)")
        for i in range(8):
            a(f"v_cmp_ne_u32 vcc, s62, {v(GA+4*i+1)}"); a(f"v_cmp_ne_u32 s[4:5], s62, {v(GA+4*i+3)}")
            a("s_or_b64 vcc, vcc, s[4:5]"); a(f"s_cselect_b32 s34, 0, {1<<i}"); a("s_or_b32 s31, s31, s34")
        if xglast:
            a(f"s_cmp_gt_u32 s30, {SPIN_MAX}"); a(f"s_cbranch_scc1 {name}_polled")
            a("s_cmp_eq_u32 s31, 0xff"); a(f"s_cbranch_scc0 {name}_poll")
            a.label(f"{name}_pollx")
            a(f"global_load_dwordx2 {v(GA+32,2)}, {v(GL+2)}, s[46:47] offset:{WS_XG} sc1")
            a("s_add_u32 s30, s30, 1")
            a("s_waitcnt vmcnt(0)")
            a(f"v_cmp_ne_u32 vcc, s62, {v(GA+33)}")
            a(f"s_cmp_gt_u32 s30, {SPIN_MAX}"); a(f"s_cbranch_scc1 {name}_polled")
            a(f"s_cbranch_vccnz {name}_pollx")
        else:
            a(f"v_cmp_ne_u32 vcc, s62, {v(GA+33)}")
            a(f"s_cmp_gt_u32 s30, {SPIN_MAX}"); a(f"s_cbranch_scc1 {name}_polled")
            a(f"s_cbranch_vccnz {name}_poll")
            a("s_cmp_eq_u32 s31, 0xff"); a(f"s_cbranch_scc0 {name}_poll")
    a.label(f"{name}_polled")
    stamp()
    for i in range(4):
        a(f"v_add_f32 {v(GA+4*i)}, {v(GA+4*i)}, {v(GA+16+4*i)}"); a(f"v_add_f32 {v(GA+4*i+2)}, {v(GA+4*i+2)}, {v(GA+16+4*i+2)}")
        a(f"v_cvt_pk_bf16_f32 {v(T+4+i)}, {v(GA+4*i)}, {v(GA+4*i+2)}")
    a(f"v_lshlrev_b32 {v(t0)}, 2, v0")
    a(f"ds_write2st64_b32 {v(t0)}, {v(T+4)}, {v(T+5)} offset0:{LDS_Q//256} offset1:{LDS_Q//256+1}")
    a(f"ds_write2st64_b32 {v(t0)}, {v(T+6)}, {v(T+7)} offset0:{LDS_Q//256+2} offset1:{LDS_Q//256+3}")
    a(f"v_cmp_ne_u32 vcc, s63, {v(GA+32)}")
    a("s_cmp_eq_u64 vcc, 0"); a("s_cselect_b32 s29, 1, 0")
    a(f"v_mov_b32 {v(t0)}, 0"); a(f"v_mov_b32 {v(t1)}, s29")
    a(f"ds_write_b32 {v(t0)}, {v(t1)} offset:{LDS_FL}")
    a("s_waitcnt lgkmcnt(0)")
    a("s_barrier")
    tail_loads()
    if prio: a("s_setprio 0")
    init_state()
    a(f"s_branch {name}_join")
    a.label(f"{name}_w0wait")
    if loopbar:
        for i in range(8): a("s_barrier")
    a(f"s_branch {name}_last")
    a.label(f"{name}_tg0")
    if codewarm:
        a("s_getpc_b64 s[96:97]")
        a.label(f"{name}_pc0")
        a(f"s_sub_u32 s96, s96, {name}_pc0-{name}_tgd"); a("s_subb_u32 s97, s97, 0")
        for i in range(codewarm):
            a(f"s_load_dword s98, s[96:97], {64*i}")
            if i % 8 == 7: a("s_waitcnt lgkmcnt(0)")
        a("s_waitcnt lgkmcnt(0)")
    a(f"v_lshlrev_b32 {v(t0)}, 4, v0"); a("s_mov_b32 s30, 0")
    a.label(f"{name}_tg")
    a(f"global_load_dwordx4 {v(GA,4)}, {v(t0)}, s[46:47] offset:{WS_XG} sc1")
    a(f"global_load_dwordx4 {v(GA+4,4)}, {v(t0)}, s[46:47] offset:{WS_XG+1024} sc1")
    a("s_add_u32 s30, s30, 1")
    a("s_waitcnt vmcnt(0)")
    for i in (1, 3, 5, 7): a(f"v_xor_b32 {v(GA+i)}, s61, {v(GA+i)}")
    a(f"v_or3_b32 {v(GA+1)}, {v(GA+1)}, {v(GA+3)}, {v(GA+5)}"); a(f"v_or_b32 {v(GA+1)}, {v(GA+1)}, {v(GA+7)}")
    a(f"v_cmp_ne_u32 vcc, 0, {v(GA+1)}")
    a(f"s_cmp_gt_u32 s30, {SPIN_MAX}"); a(f"s_cbranch_scc1 {name}_tgd")
    a(f"s_cbranch_vccnz {name}_tg")
    a(f"s_branch {name}_tgd")
    nst[0] = nst_end
    return LDS_END

def build(fn, **kw):
    a = Asm(); name = KN + "_kernel"
    lds = gen_fused(a, name, **kw)
    out = f"; @launch grid=(256,1,1) block=(512,1,1) lds={lds}\n" + '.amdgcn_target "amdgcn-amd-amdhsa--gfx950"\n.text\n' + a.text()
    out += '.section .rodata,"a"\n' + kd(name, a.maxv + 1, max(a.maxs + 1, 16))
    open(fn, "w").write(out)

if __name__ == "__main__":
    RP = [3,3,2,2,1,1,0,0,0]
    build("v13.s", rprio=RP)
    build("q_a.s", rprio=RP, stamps=True, fine=True)
```

```python
import sys
from asmlib import *
from gen import allreduce, rne1, rne2, unpack, ln_stats, ln_pair, kernel_head, kd, transp_mfma, LOG2E, SCALE, KN
WS_EP = 0x0; WS_XG = 0x400; WS_QG = 0x10000; WS_OP = 0x40000; WS_ML = 0xC0000; WS_YP = 0xD0000
WS_STAMP = 0x10000000
SPIN_MAX = 400000

def ln_stats_fast(a, X, mb, sq, rc, t0, t1, t2, t3, D, sp):
    a(f"v_readfirstlane_b32 s{sp}, {v(X[0])}")
    a(f"s_mov_b32 s{sp+1}, s{sp}")
    for i in range(0, 8, 2): a(f"v_pk_add_f32 {v(D+i,2)}, {v(X[i],2)}, s[{sp}:{sp+1}] neg_lo:[0,1] neg_hi:[0,1]")
    a(f"v_pk_mul_f32 {v(D+8,2)}, {v(D,2)}, {v(D,2)}"); a(f"v_pk_add_f32 {v(D+10,2)}, {v(D,2)}, {v(D+2,2)}")
    a(f"v_pk_fma_f32 {v(D+8,2)}, {v(D+2,2)}, {v(D+2,2)}, {v(D+8,2)}"); a(f"v_pk_add_f32 {v(D,2)}, {v(D+4,2)}, {v(D+6,2)}")
    a(f"v_pk_fma_f32 {v(D+8,2)}, {v(D+4,2)}, {v(D+4,2)}, {v(D+8,2)}"); a(f"v_pk_add_f32 {v(D+10,2)}, {v(D+10,2)}, {v(D,2)}")
    a(f"v_pk_fma_f32 {v(D+8,2)}, {v(D+6,2)}, {v(D+6,2)}, {v(D+8,2)}")
    a(f"v_add_f32 {v(t0)}, {v(D+10)}, {v(D+11)}"); a(f"v_add_f32 {v(t1)}, {v(D+8)}, {v(D+9)}")
    a(f"v_permlane32_swap_b32 {v(t0)}, {v(t1)}"); a(f"v_add_f32 {v(t0)}, {v(t0)}, {v(t1)}")
    allreduce(a, "v_add_f32", t0, t2, lanes=32)
    a(f"v_readlane_b32 s{sp+3}, {v(t0)}, 0"); a(f"v_readlane_b32 s{sp+2}, {v(t0)}, 32")
    a(f"v_mov_b32 {v(t2)}, {f32hex(1/512)}")
    a(f"v_mul_f32 {v(t0)}, s{sp+3}, {v(t2)}")
    a(f"v_mul_f32 {v(t1)}, s{sp+2}, {v(t2)}")
    a(f"v_add_f32 {v(t3)}, s{sp}, {v(t0)}")
    a(f"v_fma_f32 {v(t1)}, -{v(t0)}, {v(t0)}, {v(t1)}")
    a(f"v_max_f32 {v(t1)}, 0, {v(t1)}")
    rne2(a, mb, t1, t3, t1, t2)
    a(f"v_add_f32 {v(t1)}, {f32hex(1e-5)}, {v(t1)}")
    rne1(a, t1, t1, t2)
    a(f"v_sqrt_f32 {v(t1)}, {v(t1)}")
    rne1(a, sq, t1, t2)
    a(f"v_rcp_f32 {v(rc)}, {v(sq)}")

def gen_fused(a, name, kvpol="nt", stamps=False, first=4, prio=True, wopol="nt", qpol="nt", ps2=0, ps3=0, local=True, ldsround=7, loopbar=False, tailround=-1, noq=0, notail=False, stop=False, blockmap=False, kfirst=False, tailpart=3, vpol=None, rep8=False, qsleep=8, xgfirst=False, xglast=True, qdelay=0, rot=0, noclr=False, dup=False, fastln=True, pk=True, fine=False, rprio=None, nocomp=False, bare=False, p3x=True, dbgst=False, codewarm=0, qx=0, kvx=0):
    if vpol is None: vpol = kvpol
    vK0, vK1, vV0, vV1 = 1, 2, 3, 4
    m, negm, l, alR, mnew, al, tm = 5, 6, 7, 8, 9, 10, 11
    S = 12; P = 20; C4 = 24; Q = 28; O = 44; T = 76
    DA = 108
    KA, VA, KB, VB = 112, 144, 176, 208
    M = 240
    WO = M; W1, B1, W2 = M+8, M+10, M+12; XR = M+14; DUM = M+15
    LDS_XN = 0; LDS_Q = 1024; LDS_FL = 2048; LDS_ML = 2304
    LDS_C = 2560; LDS_R2 = LDS_C + 2048; LDS_FR = LDS_R2 + 1024; LDS_H = LDS_FR + 256
    LDS_OM = LDS_H + 2048; LDS_R1 = LDS_OM + 16384; LDS_D = LDS_R1 + 8192; LDS_END = LDS_D + 7*16384
    assert LDS_OM % 256 == 0 and LDS_R1 // 256 + 28 < 256 and LDS_R2 % 256 == 0
    nst = [0]
    def stamp():
        if stamps:
            a(f"s_memrealtime s[{64+2*nst[0]}:{65+2*nst[0]}]"); nst[0] += 1
    def tail_loads():
        t0, t1, t2 = C4, C4+1, C4+2
        if notail: return
        a("s_lshl_b32 s29, s20, 19"); a("s_and_b32 s30, s21, 1"); a("s_lshl_b32 s30, s30, 18"); a("s_add_u32 s29, s29, s30")
        a("s_lshl_b32 s30, s3, 10"); a("s_add_u32 s29, s29, s30"); a("s_lshr_b32 s30, s21, 1"); a("s_lshl_b32 s30, s30, 6"); a("s_add_u32 s29, s29, s30")
        a(f"v_lshrrev_b32 {v(t0)}, 2, v0"); a(f"v_lshlrev_b32 {v(t0)}, 13, {v(t0)}"); a(f"v_and_b32 {v(t1)}, 3, v0")
        a(f"v_lshl_add_u32 {v(t0)}, {v(t1)}, 4, {v(t0)}"); a(f"v_add_u32 {v(t0)}, s29, {v(t0)}"); a(f"v_add_u32 {v(t1)}, 0x20000, {v(t0)}")
        a("s_waitcnt lgkmcnt(0)")
        if tailpart & 1:
            a(f"global_load_dwordx4 {v(WO,4)}, {v(t0)}, s[48:49] {wopol}"); a(f"global_load_dwordx4 {v(WO+4,4)}, {v(t1)}, s[48:49] {wopol}")
        if not tailpart & 2: return
        a("s_lshl_b32 s29, s3, 8"); a(f"v_lshl_add_u32 {v(t0)}, v0, 2, s29")
        a(f"v_add_u32 {v(t1)}, 2048, {v(t0)}"); a(f"v_min_u32 {v(t1)}, {895*4}, {v(t1)}")
        a(f"v_lshrrev_b32 {v(t2)}, 1, {v(t0)}")
        for (r, sp) in ((W1, "s[52:53]"), (B1, "s[54:55]"), (W2, "s[56:57]")):
            a(f"global_load_dword {v(r)}, {v(t0)}, {sp}"); a(f"global_load_dword {v(r+1)}, {v(t1)}, {sp}")
        a(f"global_load_ushort {v(XR)}, {v(t2)}, s[36:37]")
        a(f"global_load_ushort {v(DUM)}, {v(t2)}, s[50:51]")
    def init_state():
        a(f"v_mov_b32 {v(m)}, 0xff800000"); a(f"v_mov_b32 {v(l)}, 0"); a(f"v_mov_b32 {v(negm)}, 0")
        for i in range(32): a(f"v_mov_b32 {v(O+i)}, 0")
        a(f"v_bfe_u32 {v(tm)}, v0, 2, 2"); a(f"v_lshrrev_b32 {v(al)}, 4, v0")
        a(f"v_lshlrev_b32 {v(tm)}, 8, {v(tm)}"); a(f"v_lshl_add_u32 {v(tm)}, {v(al)}, 4, {v(tm)}")
        a("s_waitcnt lgkmcnt(0)")
        a("s_load_dword s60, s[58:59], 0")
        a("s_add_u32 s61, s61, 0x9e3779b9")
    def late_setup():
        a("s_load_dwordx2 s[48:49], s[0:1], 32")
        a("s_load_dwordx8 s[52:59], s[0:1], 48")
        a("s_load_dwordx2 s[50:51], s[0:1], 80")
        a(f"s_load_dword s61, s[46:47], {WS_EP}")
        a("s_getreg_b32 s63, hwreg(HW_REG_XCC_ID, 0, 4)")
        a("s_mov_b32 s25, 0x05040100"); a("s_mov_b32 s26, 0x07060302")
        a(f"s_mov_b32 s27, {f32hex(LOG2E)}"); a(f"s_mov_b32 s28, {f32hex(SCALE)}")
    def kv_setup():
        a("s_lshl_b32 s29, s3, 13")
        if blockmap:
            a("s_mul_i32 s29, s3, 0x12000"); a("s_sub_u32 s29, s29, 0x10000"); a("s_max_i32 s29, s29, 0")
        if rot:
            a(f"s_mul_i32 s30, s2, {rot}"); a("s_lshl_b32 s30, s30, 13"); a("s_add_u32 s29, s29, s30"); a("s_and_b32 s29, s29, 0x7ffff")
        a(f"v_and_b32 {v(vK0)}, 3, v0"); a(f"v_lshlrev_b32 {v(vK0)}, 10, {v(vK0)}")
        a(f"v_bfe_u32 {v(tm)}, v0, 2, 2"); a(f"v_lshl_add_u32 {v(vK0)}, {v(tm)}, 8, {v(vK0)}")
        a(f"v_lshrrev_b32 {v(tm)}, 4, v0"); a(f"v_lshl_add_u32 {v(vK0)}, {v(tm)}, 4, {v(vK0)}")
        a(f"v_add_u32 {v(vK0)}, s29, {v(vK0)}"); a(f"v_add_u32 {v(vK1)}, 0x1000, {v(vK0)}")
        a(f"v_lshlrev_b32 {v(vV0)}, 4, v0"); a(f"v_add_u32 {v(vV0)}, s29, {v(vV0)}"); a(f"v_add_u32 {v(vV1)}, 0x1000, {v(vV0)}")
        a("s_lshl_b32 s29, s20, 24"); a(f"s_xor_b32 s30, s21, {kvx}"); a("s_lshl_b32 s30, s30, 19"); a("s_add_u32 s29, s29, s30")
        a("s_mov_b32 s10, 0x80000"); a("s_mov_b32 s11, 0x20000"); a("s_mov_b32 s14, 0x80000"); a("s_mov_b32 s15, 0x20000")
        a("s_waitcnt lgkmcnt(0)")
        a("s_add_u32 s8, s38, s29"); a("s_addc_u32 s9, s39, 0")
        a("s_add_u32 s12, s40, s29"); a("s_addc_u32 s13, s41, 0")
    def fold8(A):
        for c in range(4): a(f"v_permlane32_swap_b32 {v(A+c)}, {v(A+c+4)}")
        for c in range(4): a(f"v_add_f32 {v(A+c)}, {v(A+c)}, {v(A+c+4)}")
        for c in range(2): a(f"v_permlane16_swap_b32 {v(A+c)}, {v(A+c+2)}")
        for c in range(2): a(f"v_add_f32 {v(A+c)}, {v(A+c)}, {v(A+c+2)}")
        for rr in (8, 4):
            for c in range(2): a(f"v_add_f32_dpp {v(A+c)}, {v(A+c)}, {v(A+c)} row_ror:{rr} {DPPM}")
    kernel_head(a, name)
    a("s_cmp_ge_u32 s2, 256"); a(f"s_cbranch_scc1 {name}_end")
    stamp()
    a("s_load_dwordx8 s[36:43], s[0:1], 0")
    a("s_load_dwordx2 s[46:47], s[0:1], 96")
    a("v_lshrrev_b32 v1, 6, v0")
    a("v_readfirstlane_b32 s3, v1")
    a("v_and_b32 v0, 63, v0")
    a("s_and_b32 s20, s2, 7"); a("s_lshr_b32 s21, s2, 3")
    a("s_cmp_eq_u32 s3, 0"); a(f"s_cbranch_scc1 {name}_w0")
    a(f"s_mov_b32 s22, {0x2000 if blockmap else 0xe000}")
    kv_setup()
    cnt = [0]
    def hook():
        cnt[0] += 1
        if cnt[0] == first + 1:
            late_setup()
            a("s_barrier")
    VQ = []
    def adv(r0, r1):
        a(f"v_add_u32 {v(r0)}, s22, {v(r0)}")
        if rot:
            a(f"v_and_b32 {v(r0)}, 0x7ffff, {v(r0)}"); a(f"v_add_u32 {v(r1)}, 0x1000, {v(r0)}")
        else: a(f"v_add_u32 {v(r1)}, s22, {v(r1)}")
    def wait_for(lab):
        if lab not in VQ: return
        idx = max(i for i, x in enumerate(VQ) if x == lab)
        n = len(VQ) - 1 - idx
        a(f"s_waitcnt vmcnt({min(n, 63)})")
        del VQ[:idx+1]
    def dmaK(lab):
        for j in range(8):
            a(f"s_add_u32 m0, s24, {j*1024 - (j&3)*64}")
            a(f"buffer_load_dwordx4 {v(vK0 if j < 4 else vK1)}, s[8:11], 0 offen offset:{(j&3)*64} {kvpol} lds"); VQ.append(lab)
        adv(vK0, vK1)
    def dmaV(lab):
        for j in range(8):
            if (j & 3) == 0: a(f"s_add_u32 m0, s24, {8192 + (j>>2)*4096}")
            a(f"buffer_load_dwordx4 {v(vV0 if j < 4 else vV1)}, s[12:15], 0 offen offset:{(j&3)*1024} {vpol} lds"); VQ.append(lab)
        adv(vV0, vV1)
    def loadK(K, pc=False, lab="x"):
        for j in range(8):
            if pc: hook()
            VQ.append(lab)
            a(f"buffer_load_dwordx4 {v(K+4*j,4)}, {v(vK0 if j < 4 else vK1)}, s[8:11], 0 offen offset:{(j&3)*64} {kvpol}")
        adv(vK0, vK1)
    def loadV(V, pc=False, lab="x"):
        for j in range(8):
            if pc: hook()
            VQ.append(lab)
            a(f"buffer_load_dwordx4 {v(V+4*j,4)}, {v(vV0 if j < 4 else vV1)}, s[12:15], 0 offen offset:{(j&3)*1024} {vpol}")
        adv(vV0, vV1)
    if stamps:
        a("s_mov_b64 s[66:67], 0"); a("s_mov_b64 s[68:69], 0")
    nst_save = nst[0]; nst[0] += 2
    loadK(KA, True, "K0"); loadV(VA, True, "V0"); loadK(KB, True, "K1"); loadV(VB, True, "V1")
    a("s_lshl_b32 s24, s3, 14"); a(f"s_add_u32 s24, s24, {LDS_D - 16384}")
    if ldsround < 9:
        dmaK(f"K{ldsround}"); dmaV(f"V{ldsround}")
    if tailround < 0:
        tail_loads(); VQ.extend(["t"] * (0 if notail else (2 if tailpart & 1 else 0) + (8 if tailpart & 2 else 0)))
    init_state()
    a("s_barrier")
    a.label(f"{name}_join")
    for t in range(4): a(f"ds_read_b128 {v(Q+4*t,4)}, {v(tm)} offset:{LDS_Q+64*t}")
    a(f"v_mov_b32 {v(al)}, 0")
    a(f"ds_read_b32 {v(al)}, {v(al)} offset:{LDS_FL}")
    a("s_waitcnt lgkmcnt(0)")
    a(f"v_readfirstlane_b32 s62, {v(al)}")
    a("s_lshl_b32 s60, s60, 16")
    stamp()
    a("s_cmp_eq_u32 s3, 0"); a(f"s_cbranch_scc1 {name}_w0wait")
    a(f"v_lshl_add_u32 {v(DA)}, v0, 4, s24")
    if dup:
        a("s_mov_b32 s99, 0")
        a.label(f"{name}_again")
    NR = 9
    def tile(r):
        if nocomp:
            real = a
            class F:
                def __call__(self, s_):
                    if s_.startswith(("v_mfma", "v_cvt", "v_mul", "v_max", "v_exp", "v_fma", "v_perm", "v_add_f32", "v_lshlrev_b32", "v_and_b32", "v_cmp", "s_cbranch_vccz", "v_mov", "v_sub")): return
                    real(s_)
                def __getattr__(self, n): return getattr(real, n)
            return tile2(r, F())
        return tile2(r, a)
    def tile2(r, a):
        K, V = (KA, VA) if r % 2 == 0 else (KB, VB)
        nxt = r + 2
        fromlds = r == ldsround
        if r == NR - 1:
            a.fence(); a.label(f"{name}_last")
        if rprio and (r == 0 or rprio[r] != rprio[r-1]): a(f"s_setprio {rprio[r]}")
        if fromlds: a("s_waitcnt lgkmcnt(0)")
        else: wait_for(f"K{r}")
        for t in range(4):
            for g in range(2):
                c = "0" if t == 0 else v(S+4*g, 4)
                a(f"v_mfma_f32_16x16x32_bf16 {v(S+4*g,4)}, {v(K+16*g+4*t,4)}, {v(Q+4*t,4)}, {c}")
        if nxt == ldsround:
            wait_for(f"K{nxt}")
            for j in range(8): a(f"ds_read_b128 {v(K+4*j,4)}, {v(DA)} offset:{1024*j}")
        elif nxt < NR: loadK(K, lab=f"K{nxt}")
        for i in range(4): a(f"v_cvt_pk_bf16_f32 {v(C4+i)}, {v(S+2*i)}, {v(S+2*i+1)}")
        for i in range(4): unpack(a, S+2*i, S+2*i+1, C4+i)
        for i in range(8): a(f"v_mul_f32 {v(S+i)}, s28, {v(S+i)}")
        for i in range(4): a(f"v_cvt_pk_bf16_f32 {v(C4+i)}, {v(S+2*i)}, {v(S+2*i+1)}")
        for i in range(4): unpack(a, S+2*i, S+2*i+1, C4+i)
        a(f"v_max3_f32 {v(mnew)}, {v(m)}, {v(S)}, {v(S+1)}")
        for i in range(1, 4): a(f"v_max3_f32 {v(mnew)}, {v(mnew)}, {v(S+2*i)}, {v(S+2*i+1)}")
        a(f"v_cmp_gt_f32 vcc, {v(mnew)}, {v(m)}")
        a(f"s_cbranch_vccz {name}_skip{r}")
        a(f"v_mov_b32 {v(tm)}, {v(mnew)}"); a(f"v_permlane16_swap_b32 {v(mnew)}, {v(tm)}"); a(f"v_max_f32 {v(mnew)}, {v(mnew)}, {v(tm)}")
        a(f"v_mov_b32 {v(tm)}, {v(mnew)}"); a(f"v_permlane32_swap_b32 {v(mnew)}, {v(tm)}"); a(f"v_max_f32 {v(mnew)}, {v(mnew)}, {v(tm)}")
        a(f"v_sub_f32 {v(al)}, {v(m)}, {v(mnew)}"); a(f"v_mul_f32 {v(al)}, s27, {v(al)}"); a(f"v_exp_f32 {v(al)}, {v(al)}")
        a(f"v_mov_b32 {v(m)}, {v(mnew)}")
        a(f"v_mul_f32_e64 {v(negm)}, -{v(mnew)}, s27")
        a(f"v_mul_f32 {v(l)}, {v(l)}, {v(al)}")
        for rr in range(4): a(f"v_mov_b32_dpp {v(alR)}, {v(al)} row_newbcast:{4*rr} row_mask:{hex(1<<rr)} bank_mask:0xf")
        for e in range(8): a(f"v_mul_f32 {v(O+4*e)}, {v(alR)}, {v(O+4*e)}")
        a.label(f"{name}_skip{r}")
        for i in range(8): a(f"v_fma_f32 {v(S+i)}, {v(S+i)}, s27, {v(negm)}")
        for i in range(8): a(f"v_exp_f32 {v(S+i)}, {v(S+i)}")
        for i in range(4): a(f"v_cvt_pk_bf16_f32 {v(P+i)}, {v(S+2*i)}, {v(S+2*i+1)}")
        for i in range(4): a(f"v_add_f32 {v(C4+i)}, {v(S+2*i)}, {v(S+2*i+1)}")
        a(f"v_add_f32 {v(C4)}, {v(C4)}, {v(C4+1)}"); a(f"v_add_f32 {v(C4+2)}, {v(C4+2)}, {v(C4+3)}")
        a(f"v_add_f32 {v(C4)}, {v(C4)}, {v(C4+2)}"); a(f"v_add_f32 {v(l)}, {v(l)}, {v(C4)}")
        if not fromlds: wait_for(f"V{r}")
        def pre():
            if nxt == ldsround:
                wait_for(f"V{nxt}")
                for j in range(8): a(f"ds_read_b128 {v(V+4*j,4)}, {v(DA)} offset:{8192+1024*j}")
            elif nxt < NR: loadV(V, lab=f"V{nxt}")
        transp_mfma(a, V, T, P, O, 25, 26, between=pre)
        if tailround == 100 and r < 7:
            a(f"s_cmp_lg_u32 s3, {r+1}"); a(f"s_cbranch_scc1 {name}_tl{r}")
            tail_loads()
            a.label(f"{name}_tl{r}")
        if r == tailround:
            tail_loads(); VQ.extend(["t"] * (0 if notail else (2 if tailpart & 1 else 0) + (8 if tailpart & 2 else 0)))
        if r < NR - 1 and loopbar: a("s_barrier")
    for r in range(NR): tile(r)
    if dup:
        a.fence()
        a("s_cmp_eq_u32 s3, 0"); a(f"s_cbranch_scc1 {name}_nodup")
        a("s_cmp_eq_u32 s99, 1"); a(f"s_cbranch_scc1 {name}_nodup")
        a("s_mov_b32 s99, 1")
        kv_setup()
        loadK(KA); loadV(VA); loadK(KB); loadV(VB); dmaK("x"); dmaV("x"); tail_loads()
        a(f"v_mov_b32 {v(m)}, 0xff800000"); a(f"v_mov_b32 {v(l)}, 0"); a(f"v_mov_b32 {v(negm)}, 0")
        for i in range(32): a(f"v_mov_b32 {v(O+i)}, 0")
        a(f"s_branch {name}_again")
        a.label(f"{name}_nodup")
    stamp()
    t0, t1, t2, t3 = C4, C4+1, C4+2, C4+3
    if stop:
        for i in range(5): stamp()
        a(f"s_branch {name}_fin2")
        nst[0] -= 5
    a.fence()
    a("s_cmp_eq_u32 s3, 0"); a(f"s_cbranch_scc1 {name}_tg0")
    a.label(f"{name}_tgd")
    a(f"v_mov_b32 {v(tm)}, {v(l)}"); a(f"v_permlane16_swap_b32 {v(l)}, {v(tm)}"); a(f"v_add_f32 {v(l)}, {v(l)}, {v(tm)}")
    a("s_lshl_b32 s29, s3, 11")
    a(f"v_lshl_add_u32 {v(t0)}, v0, 2, s29")
    a(f"v_mov_b32 {v(tm)}, {v(l)}"); a(f"v_permlane32_swap_b32 {v(l)}, {v(tm)}"); a(f"v_add_f32 {v(S+1)}, {v(l)}, {v(tm)}")
    a("s_lshl_b32 s29, s3, 3")
    a(f"v_lshl_add_u32 {v(al)}, v0, 4, s29")
    a(f"v_mul_f32 {v(S)}, s27, {v(m)}")
    a("s_mov_b64 exec, 0x1111")
    a(f"ds_write_b64 {v(al)}, {v(S,2)} offset:{LDS_ML}")
    a("s_mov_b64 exec, -1")
    for k in range(4): a(f"ds_write2st64_b32 {v(t0)}, {v(O+8*k)}, {v(O+8*k+4)} offset0:{LDS_OM//256+2*k} offset1:{LDS_OM//256+2*k+1}")
    a(f"v_lshrrev_b32 {v(tm)}, 4, v0"); a(f"v_lshlrev_b32 {v(tm)}, 6, {v(tm)}")
    a("s_lshl_b32 s30, s3, 8")
    a(f"v_lshl_add_u32 {v(al)}, v0, 2, s30")
    a("s_lshl_b32 s30, s20, 16"); a("s_lshl_b32 s34, s21, 10"); a("s_add_u32 s30, s30, s34"); a("s_lshl_b32 s34, s3, 7"); a("s_add_u32 s30, s30, s34")
    a(f"s_add_u32 s30, s30, {WS_OP}")
    a(f"v_lshrrev_b32 {v(t1)}, 5, v0"); a(f"v_lshlrev_b32 {v(t1)}, 15, {v(t1)}"); a(f"v_and_b32 {v(t2)}, 31, v0")
    a(f"v_lshl_add_u32 {v(t1)}, {v(t2)}, 2, {v(t1)}"); a(f"v_add_u32 {v(t1)}, s30, {v(t1)}")
    a("s_lshl_b32 s30, s20, 10"); a("s_lshl_b32 s34, s21, 3"); a("s_add_u32 s30, s30, s34")
    a(f"s_add_u32 s30, s30, {WS_ML}"); a(f"v_lshl_add_u32 {v(P)}, v0, 4, s30")
    a("s_mov_b32 s6, 0x00010001"); a("s_mov_b32 s7, 0x00010001")
    a("s_waitcnt lgkmcnt(0)")
    a("s_barrier")
    for i in range(4): a(f"ds_read_b128 {v(T+4*i,4)}, {v(tm)} offset:{LDS_ML+16*i}")
    for w in range(0, 8, 2):
        a(f"ds_read2st64_b32 {v(T+16+w,2)}, {v(al)} offset0:{LDS_OM//256 + 8*w} offset1:{LDS_OM//256 + 8*(w+1)}")
    ML = VA; OO = KB; ACC = VA + 8; CW = VA + 16; vx = VA + 4; U = VA + 24
    aML = KA; aO = KA + 1
    a("s_and_b32 s33, s21, 1")
    a("s_lshl_b32 s29, s20, 10"); a("s_lshl_b32 s30, s33, 9"); a("s_add_u32 s29, s29, s30"); a(f"s_add_u32 s29, s29, {WS_ML}")
    a(f"v_lshl_add_u32 {v(aML)}, {v(t2)}, 4, s29")
    a("s_lshl_b32 s29, s20, 16"); a("s_lshl_b32 s30, s33, 15"); a("s_add_u32 s29, s29, s30"); a("s_lshl_b32 s30, s3, 12"); a("s_add_u32 s29, s29, s30")
    a(f"s_add_u32 s29, s29, {WS_OP}")
    a(f"v_lshl_add_u32 {v(aO)}, v0, 4, s29")
    a("s_waitcnt lgkmcnt(4)")
    Mx = S
    a(f"v_max3_f32 {v(Mx)}, {v(T)}, {v(T+2)}, {v(T+4)}"); a(f"v_max3_f32 {v(t0)}, {v(T+6)}, {v(T+8)}, {v(T+10)}")
    a(f"v_max3_f32 {v(Mx)}, {v(Mx)}, {v(T+12)}, {v(T+14)}"); a(f"v_max_f32 {v(Mx)}, {v(Mx)}, {v(t0)}")
    for w in range(8): a(f"v_sub_f32 {v(T+2*w)}, {v(T+2*w)}, {v(Mx)}")
    for w in range(8): a(f"v_exp_f32 {v(T+2*w)}, {v(T+2*w)}")
    a("s_waitcnt lgkmcnt(0)")
    a(f"v_mul_f32 {v(S+2)}, {v(T)}, {v(T+16)}"); a(f"v_mul_f32 {v(S+3)}, {v(T+2)}, {v(T+17)}")
    for w in range(2, 8): a(f"v_fmac_f32 {v(S+2+(w&1))}, {v(T+2*w)}, {v(T+16+w)}")
    a(f"v_add_f32 {v(S+2)}, {v(S+2)}, {v(S+3)}")
    a(f"v_min_u32 {v(S+2)}, -2, {v(S+2)}")
    def dual_store(txt, lab):
        if local:
            a("s_cmp_eq_u32 s62, 1"); a(f"s_cbranch_scc1 {name}_{lab}a")
            a(txt + " sc1"); a(f"s_branch {name}_{lab}b")
            a.label(f"{name}_{lab}a"); a(txt); a.label(f"{name}_{lab}b")
        else: a(txt + " sc1")
    dual_store(f"global_store_dword {v(t1)}, {v(S+2)}, s[46:47]", "so")
    a("s_cmp_lg_u32 s3, 0"); a(f"s_cbranch_scc1 {name}_noml")
    a(f"v_mul_f32 {v(S+1)}, {v(T)}, {v(T+1)}"); a(f"v_mul_f32 {v(S+3)}, {v(T+2)}, {v(T+3)}")
    for w in range(2, 8): a(f"v_fmac_f32 {v(S+1+2*(w&1))}, {v(T+2*w)}, {v(T+2*w+1)}")
    a(f"v_add_f32 {v(S+1)}, {v(S+1)}, {v(S+3)}")
    a(f"v_min_u32 {v(S)}, -2, {v(Mx)}"); a(f"v_min_u32 {v(S+1)}, -2, {v(S+1)}")
    a("s_mov_b64 exec, s[6:7]")
    dual_store(f"global_store_dwordx2 {v(P)}, {v(S,2)}, s[46:47]", "sm")
    a("s_mov_b64 exec, -1")
    a.label(f"{name}_noml")
    stamp()
    a("s_mov_b32 s30, 0"); a("s_mov_b32 s31, 0")
    WU = VB
    a(f"s_lshl_b32 s29, s3, 8"); a(f"v_lshl_add_u32 {v(t1)}, {v(t2)}, 3, s29")
    a(f"v_bfe_u32 {v(t3)}, v0, 2, 1"); a("s_lshl_b32 s34, s3, 4"); a("s_add_u32 s29, s29, s34"); a(f"v_lshl_add_u32 {v(t3)}, {v(t3)}, 7, s29")
    a.label(f"{name}_p2")
    a(f"global_load_dwordx4 {v(ML,4)}, {v(aML)}, s[46:47] sc1")
    a("s_cmp_eq_u32 s31, 1"); a(f"s_cbranch_scc1 {name}_p2m")
    for i in range(4):
        a(f"global_load_dwordx4 {v(OO+4*i,4)}, {v(aO)}, s[46:47] offset:{1024*i} sc1")
    a("s_waitcnt vmcnt(0)")
    a(f"v_max3_u32 {v(vx)}, {v(OO)}, {v(OO+1)}, {v(OO+2)}"); a(f"v_max3_u32 {v(vx+1)}, {v(OO+3)}, {v(OO+4)}, {v(OO+5)}")
    for i in range(6, 14, 4):
        a(f"v_max3_u32 {v(vx)}, {v(vx)}, {v(OO+i)}, {v(OO+i+1)}"); a(f"v_max3_u32 {v(vx+1)}, {v(vx+1)}, {v(OO+i+2)}, {v(OO+i+3)}")
    a(f"v_max3_u32 {v(vx)}, {v(vx)}, {v(OO+14)}, {v(OO+15)}"); a(f"v_max_u32 {v(vx)}, {v(vx)}, {v(vx+1)}")
    a(f"v_cmp_eq_u32 vcc, -1, {v(vx)}")
    a("s_cmp_eq_u64 vcc, 0"); a("s_cselect_b32 s31, 1, 0")
    a.label(f"{name}_p2m")
    a("s_add_u32 s30, s30, 1")
    a("s_waitcnt vmcnt(0)")
    a(f"v_max3_u32 {v(vx)}, {v(ML)}, {v(ML+1)}, {v(ML+2)}"); a(f"v_max_u32 {v(vx)}, {v(vx)}, {v(ML+3)}")
    a(f"v_cmp_eq_u32 vcc, -1, {v(vx)}")
    a(f"s_cmp_gt_u32 s30, {SPIN_MAX}"); a(f"s_cbranch_scc1 {name}_p2d")
    a(f"s_cbranch_vccnz {name}_p2s")
    a("s_cmp_eq_u32 s31, 1"); a(f"s_cbranch_scc1 {name}_p2d")
    a.label(f"{name}_p2s")
    if ps2: a(f"s_sleep {ps2}")
    a(f"s_branch {name}_p2")
    a.label(f"{name}_p2d")
    stamp()
    a(f"v_max_f32 {v(t0)}, {v(ML)}, {v(ML+2)}")
    allreduce(a, "v_max_f32", t0, tm, lanes=16)
    a(f"v_sub_f32 {v(vx)}, {v(ML)}, {v(t0)}"); a(f"v_sub_f32 {v(vx+1)}, {v(ML+2)}, {v(t0)}")
    a(f"v_exp_f32 {v(vx)}, {v(vx)}"); a(f"v_exp_f32 {v(vx+1)}, {v(vx+1)}")
    a(f"ds_write_b64 {v(t1)}, {v(vx,2)} offset:{LDS_C}")
    a(f"v_mul_f32 {v(t0)}, {v(vx)}, {v(ML+1)}"); a(f"v_fmac_f32 {v(t0)}, {v(vx+1)}, {v(ML+3)}")
    a("s_waitcnt lgkmcnt(0)")
    a(f"ds_read_b128 {v(CW,4)}, {v(t3)} offset:{LDS_C}")
    allreduce(a, "v_add_f32", t0, tm, lanes=16)
    a(f"v_rcp_f32 {v(t0)}, {v(t0)}")
    a("s_lshl_b32 s34, s3, 10"); a(f"v_lshl_add_u32 {v(t1)}, v0, 4, s34")
    a(f"v_lshrrev_b32 {v(t3)}, 2, v0"); a("s_lshl_b32 s34, s3, 7"); a(f"v_lshl_add_u32 {v(t3)}, {v(t3)}, 2, s34")
    a(f"v_readlane_b32 s4, {v(t0)}, 0"); a(f"v_readlane_b32 s5, {v(t0)}, 16")
    a("s_waitcnt lgkmcnt(0)")
    for k in range(4):
        for c in range(4):
            op = "v_mul_f32" if k == 0 else "v_fmac_f32"
            a(f"{op} {v(ACC+c)}, {v(CW+k)}, {v(OO+4*k+c)}")
    a(f"ds_write_b128 {v(t1)}, {v(ACC,4)} offset:{LDS_R1}")
    for c in range(8): unpack(a, WU+2*c, WU+2*c+1, WO+c)
    a(f"v_add_u32 {v(t0)}, 64, {v(t3)}")
    a(f"v_and_b32 {v(t1)}, 3, v0"); a(f"v_lshrrev_b32 {v(tm)}, 4, v0"); a(f"v_lshlrev_b32 {v(t1)}, 5, {v(t1)}"); a(f"v_lshl_add_u32 {v(t1)}, {v(tm)}, 3, {v(t1)}")
    a(f"v_add_u32 {v(t1)}, s34, {v(t1)}")
    a("s_waitcnt lgkmcnt(0)"); a("s_barrier")
    b0 = LDS_R1 // 256
    for k in range(4): a(f"ds_read2st64_b32 {v(U+2*k,2)}, {v(t3)} offset0:{b0+8*k} offset1:{b0+8*k+4}")
    for k in range(4): a(f"ds_read2st64_b32 {v(U+8+2*k,2)}, {v(t0)} offset0:{b0+8*k} offset1:{b0+8*k+4}")
    a(f"v_lshlrev_b32 {v(t2)}, 2, v0")
    a("s_lshl_b32 s29, s20, 12"); a("s_lshl_b32 s30, s33, 11"); a("s_add_u32 s29, s29, s30"); a("s_lshr_b32 s30, s21, 1"); a("s_lshl_b32 s30, s30, 7")
    a("s_add_u32 s29, s29, s30"); a(f"s_add_u32 s29, s29, {WS_YP}")
    if rep8:
        a(f"v_lshrrev_b32 {v(t3)}, 3, v0"); a(f"v_lshlrev_b32 {v(t3)}, 15, {v(t3)}"); a(f"v_and_b32 {v(t2)}, 7, v0"); a(f"v_lshlrev_b32 {v(t2)}, 4, {v(t2)}")
        a(f"v_add3_u32 {v(t3)}, {v(t3)}, {v(t2)}, s29")
    else: a(f"v_add_u32 {v(t3)}, s29, {v(t2)}")
    a("s_mov_b32 s6, 0x000f000f"); a("s_mov_b32 s7, 0x000f000f")
    a("s_waitcnt lgkmcnt(4)")
    for k in range(4): a(f"v_add_f32 {v(U+2*k)}, {v(U+2*k)}, {v(U+2*k+1)}")
    a(f"v_add_f32 {v(U)}, {v(U)}, {v(U+2)}"); a(f"v_add_f32 {v(U+4)}, {v(U+4)}, {v(U+6)}")
    a("s_waitcnt lgkmcnt(0)")
    for k in range(4): a(f"v_add_f32 {v(U+8+2*k)}, {v(U+8+2*k)}, {v(U+8+2*k+1)}")
    a(f"v_add_f32 {v(U+8)}, {v(U+8)}, {v(U+10)}"); a(f"v_add_f32 {v(U+12)}, {v(U+12)}, {v(U+14)}")
    a(f"v_add_f32 {v(U)}, {v(U)}, {v(U+4)}"); a(f"v_add_f32 {v(U+1)}, {v(U+8)}, {v(U+12)}")
    a(f"v_mul_f32 {v(U)}, s4, {v(U)}"); a(f"v_mul_f32 {v(U+1)}, s5, {v(U+1)}")
    rne2(a, U, U+1, U, U+1, t0)
    for c in range(8): a(f"v_mul_f32 {v(WU+c)}, {v(U)}, {v(WU+c)}")
    for c in range(8): a(f"v_fmac_f32 {v(WU+c)}, {v(U+1)}, {v(WU+8+c)}")
    fold8(WU)
    a("s_mov_b64 exec, s[6:7]")
    a(f"ds_write_b64 {v(t1)}, {v(WU,2)} offset:{LDS_R2}")
    a("s_mov_b64 exec, -1")
    a("s_waitcnt lgkmcnt(0)"); a("s_barrier")
    a("s_cmp_lg_u32 s3, 0"); a(f"s_cbranch_scc1 {name}_s3")
    if rep8:
        for w_ in range(8): a(f"ds_read_b128 {v(KB+4*w_,4)}, {v(t2)} offset:{LDS_R2+128*w_}")
        for w_ in range(4):
            a(f"s_waitcnt lgkmcnt({6-2*w_})")
            for c in range(0, 4, 2): a(f"v_pk_add_f32 {v(KB+8*w_+c,2)}, {v(KB+8*w_+c,2)}, {v(KB+8*w_+4+c,2)}")
        for c in range(0, 4, 2): a(f"v_pk_add_f32 {v(KB+c,2)}, {v(KB+c,2)}, {v(KB+8+c,2)}")
        for c in range(0, 4, 2): a(f"v_pk_add_f32 {v(KB+16+c,2)}, {v(KB+16+c,2)}, {v(KB+24+c,2)}")
        for c in range(0, 4, 2): a(f"v_pk_add_f32 {v(KB+c,2)}, {v(KB+c,2)}, {v(KB+16+c,2)}")
        for c in range(4): a(f"v_min_u32 {v(KB+c)}, -2, {v(KB+c)}")
        a(f"global_store_dwordx4 {v(t3)}, {v(KB,4)}, s[46:47] sc1")
    else:
        a(f"ds_read2st64_b32 {v(U,2)}, {v(t2)} offset0:{LDS_R2//256} offset1:{LDS_R2//256+1}")
        a(f"ds_read2st64_b32 {v(U+2,2)}, {v(t2)} offset0:{LDS_R2//256+2} offset1:{LDS_R2//256+3}")
        a("s_waitcnt lgkmcnt(0)")
        a(f"v_add_f32 {v(U)}, {v(U)}, {v(U+1)}"); a(f"v_add_f32 {v(U+2)}, {v(U+2)}, {v(U+3)}"); a(f"v_add_f32 {v(U)}, {v(U)}, {v(U+2)}")
        a(f"v_mov_b32 {v(tm)}, {v(U)}"); a(f"v_permlane32_swap_b32 {v(U)}, {v(tm)}"); a(f"v_add_f32 {v(U)}, {v(U)}, {v(tm)}")
        a(f"v_min_u32 {v(U)}, -2, {v(U)}")
        a("s_mov_b32 exec_hi, 0")
        a(f"global_store_dword {v(t3)}, {v(U)}, s[46:47] sc1")
        a("s_mov_b64 exec, -1")
    a.fence()
    a.label(f"{name}_s3")
    stamp()
    Y = KA; AY = KB
    if rep8:
        a("s_and_b32 s29, s63, 7"); a("s_lshl_b32 s29, s29, 15"); a(f"v_add_u32 {v(t0)}, s29, {v(al)}")
    for i in range(8): a(f"v_add_u32 {v(AY+i)}, {WS_YP + 0x1000*i}, {v(t0 if rep8 else al)}")
    W1u = [VA, VA+2]; B1u = [VA+4, VA+6]; CC0 = VA+8; ONE = VA+10
    for k in range(2):
        unpack(a, W1u[k], W1u[k]+1, W1+k); unpack(a, B1u[k], B1u[k]+1, B1+k)
    c0 = -2.0 * LOG2E * 0.7978845608028654; c1 = c0 * 0.044715
    a(f"v_mov_b32 {v(CC0)}, {f32hex(c0)}"); a(f"v_mov_b32 {v(CC0+1)}, {f32hex(c0)}"); a(f"v_mov_b32 {v(ONE)}, 1.0"); a(f"v_mov_b32 {v(ONE+1)}, 1.0")
    a(f"s_mov_b32 s4, {f32hex(c1)}"); a(f"s_mov_b32 s5, {f32hex(c1)}")
    a("s_cmp_lt_u32 s3, 6"); a(f"s_cbranch_scc1 {name}_w2ok")
    a(f"v_mov_b32 {v(W2+1)}, 0")
    a.label(f"{name}_w2ok")
    a(f"v_lshlrev_b32 {v(XR)}, 16, {v(XR)}")
    a("s_mov_b32 s30, 0"); a("s_mov_b32 s31, 0")
    vx = KA + 16
    if p3x:
        MK = 80
        for i in range(8): a(f"s_mov_b64 s[{MK+2*i}:{MK+2*i+1}], -1")
        a.label(f"{name}_p3")
        for i in range(8):
            a(f"s_mov_b64 exec, s[{MK+2*i}:{MK+2*i+1}]")
            a(f"global_load_dword {v(Y+2*i)}, {v(AY+i)}, s[46:47] sc1")
            a(f"global_load_dword {v(Y+2*i+1)}, {v(AY+i)}, s[46:47] offset:2048 sc1")
        a("s_mov_b64 exec, -1")
        a("s_add_u32 s30, s30, 1")
        for i in range(8):
            a(f"s_waitcnt vmcnt({14-2*i})")
            a(f"v_max_u32 {v(vx+i)}, {v(Y+2*i)}, {v(Y+2*i+1)}")
            a(f"v_cmp_eq_u32 s[{MK+2*i}:{MK+2*i+1}], -1, {v(vx+i)}")
            if i == 1: a(f"s_or_b64 s[34:35], s[{MK}:{MK+1}], s[{MK+2}:{MK+3}]")
            if i > 1: a(f"s_or_b64 s[34:35], s[34:35], s[{MK+2*i}:{MK+2*i+1}]")
        a(f"s_cbranch_scc0 {name}_p3d")
        a(f"s_cmp_gt_u32 s30, {SPIN_MAX}"); a(f"s_cbranch_scc0 {name}_p3")
    else:
        a.label(f"{name}_p3")
        for i in range(8):
            a(f"s_bitcmp1_b32 s31, {i}"); a(f"s_cbranch_scc1 {name}_p3k{i}")
            a(f"global_load_dword {v(Y+2*i)}, {v(AY+i)}, s[46:47] sc1")
            a(f"global_load_dword {v(Y+2*i+1)}, {v(AY+i)}, s[46:47] offset:2048 sc1")
            a.label(f"{name}_p3k{i}")
        a("s_add_u32 s30, s30, 1")
        a("s_waitcnt vmcnt(0)")
        for i in range(8): a(f"v_max_u32 {v(vx+i)}, {v(Y+2*i)}, {v(Y+2*i+1)}")
        a(f"v_max3_u32 {v(vx+8)}, {v(vx)}, {v(vx+1)}, {v(vx+2)}"); a(f"v_max3_u32 {v(vx+9)}, {v(vx+3)}, {v(vx+4)}, {v(vx+5)}")
        a(f"v_max3_u32 {v(vx+8)}, {v(vx+8)}, {v(vx+6)}, {v(vx+7)}"); a(f"v_max_u32 {v(vx+8)}, {v(vx+8)}, {v(vx+9)}")
        a(f"v_cmp_eq_u32 vcc, -1, {v(vx+8)}")
        a(f"s_cbranch_vccz {name}_p3d")
        a(f"s_cmp_gt_u32 s30, {SPIN_MAX}"); a(f"s_cbranch_scc1 {name}_p3d")
        for i in range(8):
            a(f"v_cmp_eq_u32 vcc, -1, {v(vx+i)}")
            a("s_cmp_eq_u64 vcc, 0"); a(f"s_cselect_b32 s34, {1<<i}, 0"); a("s_or_b32 s31, s31, s34")
        if ps3: a(f"s_sleep {ps3}")
        a(f"s_branch {name}_p3")
    a.label(f"{name}_p3d")
    stamp()
    for k in range(8): a(f"v_add_f32 {v(Y+2*k)}, {v(Y+2*k)}, {v(Y+2*k+1)}")
    for k in range(4): a(f"v_add_f32 {v(Y+4*k)}, {v(Y+4*k)}, {v(Y+4*k+2)}")
    a(f"v_add_f32 {v(Y)}, {v(Y)}, {v(Y+4)}"); a(f"v_add_f32 {v(Y+8)}, {v(Y+8)}, {v(Y+12)}"); a(f"v_add_f32 {v(Y)}, {v(Y)}, {v(Y+8)}")
    rne1(a, Y, Y, t1)
    a(f"v_add_f32 {v(Y)}, {v(Y)}, {v(XR)}")
    rne1(a, Y, Y, t1)
    a(f"ds_write_b32 {v(al)}, {v(Y)} offset:{LDS_H}")
    a(f"v_lshlrev_b32 {v(t2)}, 4, v0")
    a("s_lshl_b32 s29, s2, 3"); a(f"v_mov_b32 {v(t1)}, s29")
    Y = VB
    X = [Y+8+i for i in range(8)]; mb, sq, rc = Y+16, Y+17, Y+18; PK = Y+20; HP = Y+24; HH = Y+26
    a("s_waitcnt lgkmcnt(0)"); a("s_barrier")
    a("s_cmp_lg_u32 s3, 0"); a(f"s_cbranch_scc1 {name}_lnw")
    a(f"ds_read_b128 {v(X[0],4)}, {v(t2)} offset:{LDS_H}"); a(f"ds_read_b128 {v(X[4],4)}, {v(t2)} offset:{LDS_H+1024}")
    a(f"ds_read_b64 {v(HH,2)}, {v(t1)} offset:{LDS_H}")
    a("s_waitcnt lgkmcnt(0)")
    if fine: stamp()
    def stats():
        if fastln: ln_stats_fast(a, X, mb, sq, rc, t0, t1, t2, t3, KB, 32)
        else: ln_stats(a, X, mb, sq, rc, t0, t1, t2)
    stats()
    TA = [KA + 4*i for i in range(5)]
    assert mb % 2 == 0 and rc % 2 == 0
    srcs = [X[2*i] for i in range(4)] + [HH]
    for xs, tb in zip(srcs, TA): a(f"v_pk_add_f32 {v(tb,2)}, {v(xs,2)}, {v(mb,2)} op_sel_hi:[1,0] neg_lo:[0,1] neg_hi:[0,1]")
    for tb in TA: a(f"v_cvt_pk_bf16_f32 {v(tb+2)}, {v(tb)}, {v(tb+1)}")
    for tb in TA: unpack(a, tb, tb+1, tb+2)
    for tb in TA: a(f"v_pk_mul_f32 {v(tb+2,2)}, {v(tb,2)}, {v(rc,2)} op_sel_hi:[1,0]")
    tb = TA[4]
    a(f"v_fma_f32 {v(tb)}, -{v(tb+2)}, {v(sq)}, {v(tb)}"); a(f"v_fma_f32 {v(tb+1)}, -{v(tb+3)}, {v(sq)}, {v(tb+1)}")
    for t_ in TA[:4]: a(f"v_cvt_pk_bf16_f32 {v(t_)}, {v(t_+2)}, {v(t_+3)}")
    a(f"v_fmac_f32 {v(tb+2)}, {v(tb)}, {v(rc)}"); a(f"v_fmac_f32 {v(tb+3)}, {v(tb+1)}, {v(rc)}")
    for i in range(4): unpack(a, X[2*i], X[2*i+1], TA[i])
    a(f"v_cvt_pk_bf16_f32 {v(tb)}, {v(tb+2)}, {v(tb+3)}")
    unpack(a, HP, HP+1, tb)
    stats()
    ln_pair(a, HP, HP+1, mb, sq, rc, PK, t0, t1, t2, t3)
    a(f"v_mov_b32 {v(t0)}, 0")
    a(f"ds_write_b32 {v(t0)}, {v(PK)} offset:{LDS_FL}")
    a("s_waitcnt lgkmcnt(0)")
    a.label(f"{name}_lnw")
    if fine: nst[0] -= 1; stamp()
    a(f"v_mov_b32 {v(t0)}, 0")
    a("s_barrier")
    a(f"ds_read_b32 {v(PK)}, {v(t0)} offset:{LDS_FL}")
    a("s_waitcnt lgkmcnt(0)")
    unpack(a, HP, HP+1, PK)
    if fine: stamp()
    u = [VA+12+i for i in range(8)]; w = [VA+20+i for i in range(8)]; z = [VA+28, VA+29]; tc = [KA+i for i in range(4)]
    units = [(k, ch) for k in range(2) for ch in range(2)]
    def each(fn):
        for i, (k, ch) in enumerate(units): fn(u[2*i], w[2*i], tc[i], k, ch)
    def rn(U, W_, t, k, ch):
        a(f"v_cvt_pk_bf16_f32 {v(t)}, {v(U)}, {v(U+1)}")
    each(lambda U, W_, t, k, ch: a(f"v_pk_mul_f32 {v(U,2)}, {v(W1u[k],2)}, {v(HP,2)} op_sel:[0,{ch}] op_sel_hi:[1,{ch}]"))
    each(rn); each(lambda U, W_, t, k, ch: unpack(a, U, U+1, t))
    each(lambda U, W_, t, k, ch: a(f"v_pk_add_f32 {v(U,2)}, {v(U,2)}, {v(B1u[k],2)}"))
    each(rn); each(lambda U, W_, t, k, ch: unpack(a, U, U+1, t))
    each(lambda U, W_, t, k, ch: a(f"v_pk_mul_f32 {v(W_,2)}, {v(U,2)}, {v(U,2)}"))
    each(lambda U, W_, t, k, ch: a(f"v_pk_fma_f32 {v(W_,2)}, {v(W_,2)}, s[4:5], {v(CC0,2)}"))
    each(lambda U, W_, t, k, ch: a(f"v_pk_mul_f32 {v(W_,2)}, {v(W_,2)}, {v(U,2)}"))
    for i in range(8): a(f"v_exp_f32 {v(w[i])}, {v(w[i])}")
    each(lambda U, W_, t, k, ch: a(f"v_pk_add_f32 {v(W_,2)}, {v(W_,2)}, {v(ONE,2)}"))
    for i in range(8): a(f"v_rcp_f32 {v(w[i])}, {v(w[i])}")
    each(lambda U, W_, t, k, ch: a(f"v_pk_mul_f32 {v(U,2)}, {v(U,2)}, {v(W_,2)}"))
    each(rn)
    each(lambda U, W_, t, k, ch: a(f"v_dot2_f32_bf16 {v(z[ch])}, {v(t)}, {v(W2+k)}, {'0' if k == 0 else v(z[ch])}"))
    a(f"v_permlane32_swap_b32 {v(z[0])}, {v(z[1])}"); a(f"v_add_f32 {v(z[0])}, {v(z[0])}, {v(z[1])}")
    allreduce(a, "v_add_f32", z[0], t0, lanes=32)
    if fine: stamp()
    a("s_lshl_b32 s29, s3, 2"); a(f"v_add_u32 {v(t0)}, s29, v0")
    a("s_mov_b32 s6, 1"); a("s_mov_b32 s7, 1")
    a(f"v_and_b32 {v(t1)}, 32, v0")
    a("s_mov_b64 exec, s[6:7]")
    a(f"ds_write_b32 {v(t0)}, {v(z[0])} offset:{LDS_FR}")
    a("s_mov_b64 exec, -1")
    a(f"v_cmp_ne_u32 vcc, 0, {v(t1)}")
    a(f"v_cndmask_b32 {v(HH)}, {v(HH)}, {v(HH+1)}, vcc")
    a(f"v_lshrrev_b32 {v(t2)}, 4, {v(t1)}"); a("s_lshl_b32 s29, s2, 2"); a(f"v_add_u32 {v(t2)}, s29, {v(t2)}")
    a("s_waitcnt lgkmcnt(0)"); a("s_barrier")
    a("s_cmp_lg_u32 s3, 0"); a(f"s_cbranch_scc1 {name}_fin")
    a(f"ds_read_b128 {v(u[0],4)}, {v(t1)} offset:{LDS_FR}"); a(f"ds_read_b128 {v(u[4],4)}, {v(t1)} offset:{LDS_FR+16}")
    a(f"v_mov_b32 {v(t0)}, 0"); a(f"v_mov_b32 {v(t1)}, s61")
    a("s_waitcnt lgkmcnt(0)")
    for i in range(4): a(f"v_add_f32 {v(u[i])}, {v(u[i])}, {v(u[4+i])}")
    a(f"v_add_f32 {v(u[0])}, {v(u[0])}, {v(u[1])}"); a(f"v_add_f32 {v(u[2])}, {v(u[2])}, {v(u[3])}"); a(f"v_add_f32 {v(z[0])}, {v(u[0])}, {v(u[2])}")
    rne1(a, z[0], z[0], t3)
    a(f"v_add_f32 {v(z[0])}, s60, {v(z[0])}")
    rne1(a, z[0], z[0], t3)
    a(f"v_add_f32 {v(z[0])}, {v(z[0])}, {v(HH)}")
    a(f"v_cvt_pk_bf16_f32 {v(z[0])}, {v(z[0])}, {v(z[0])}")
    a("s_mov_b64 exec, s[6:7]")
    a(f"global_store_short {v(t2)}, {v(z[0])}, s[50:51]")
    a("s_cmp_lg_u32 s2, 0"); a(f"s_cbranch_scc1 {name}_fin")
    a("s_mov_b64 exec, 1")
    a(f"global_store_dword {v(t0)}, {v(t1)}, s[46:47] offset:{WS_EP}")
    a.label(f"{name}_fin")
    if fine: stamp()
    if stamps:
        a("s_mov_b64 exec, 1")
        a("s_waitcnt vmcnt(0)")
        stamp()
        a.label(f"{name}_fin2")
        a("s_mov_b64 exec, 1")
        a("s_waitcnt lgkmcnt(0)")
        assert nst[0] <= 16
        a("s_lshl_b32 s29, s2, 3"); a("s_add_u32 s29, s29, s3"); a("s_lshl_b32 s29, s29, 7"); a(f"s_add_u32 s29, s29, {WS_STAMP}")
        a(f"v_mov_b32 {v(tm)}, s29")
        n = (nst[0] + 1) // 2
        if dbgst:
            a("s_load_dwordx2 s[44:45], s[0:1], 88")
            a("s_not_b32 s29, s64")
            a(f"v_mov_b32 {v(T)}, s29")
            for i in range(nst[0]): a(f"v_writelane_b32 {v(T)}, s{64+2*i}, {i+1}")
            a(f"s_mov_b64 exec, {hex((1 << (nst[0]+1)) - 1)}")
            a(f"v_lshlrev_b32 {v(T+1)}, 2, v0")
            a("s_waitcnt lgkmcnt(0)")
            a(f"global_atomic_umax {v(T+1)}, {v(T)}, s[44:45]")
            a("s_endpgm")
        for i in range(4*n): a(f"v_mov_b32 {v(T+i)}, s{64+i}")
        for i in range(n): a(f"global_store_dwordx4 {v(tm)}, {v(T+4*i,4)}, s[46:47] offset:{16*i}")
    a.label(f"{name}_end"); a("s_endpgm")
    a.label(f"{name}_w0")
    nst_end = nst[0]; nst[0] = nst_save
    if bare:
        a("s_mov_b32 s22, 0"); kv_setup(); loadK(KA); loadV(VA); a("s_barrier"); late_setup(); a("s_waitcnt vmcnt(0)"); stamp(); stamp(); nst[0] -= 2
        a("s_barrier"); init_state(); a(f"s_branch {name}_join")
    if prio: a("s_setprio 3")
    W = KB; X = [M+i for i in range(8)]; xr = M + 8; vo = M + 12; mb, sq, rc = M+13, M+14, M+15
    t0, t1, t2, t3 = T, T+1, T+2, T+3
    CL = O
    a(f"v_lshrrev_b32 {v(t0)}, 2, v0"); a(f"v_and_b32 {v(t1)}, 3, v0"); a(f"v_lshlrev_b32 {v(t2)}, 6, {v(t0)}"); a(f"v_lshl_add_u32 {v(t2)}, {v(t1)}, 3, {v(t2)}")
    a(f"v_lshlrev_b32 {v(vo)}, 13, {v(t0)}"); a(f"v_lshl_add_u32 {v(vo)}, {v(t1)}, 4, {v(vo)}")
    a("s_and_b32 s31, s21, 1"); a("s_lshr_b32 s34, s21, 1")
    a("s_lshl_b32 s32, s20, 10"); a(f"s_xor_b32 s33, s34, {qx}"); a("s_lshl_b32 s33, s33, 6"); a("s_add_u32 s32, s32, s33"); a("s_lshl_b32 s33, s31, 21"); a("s_add_u32 s32, s32, s33")
    a("s_mov_b32 s18, 0x400000"); a("s_mov_b32 s19, 0x20000")
    a("s_waitcnt lgkmcnt(0)")
    a(f"global_load_dwordx2 {v(xr,2)}, {v(t2)}, s[36:37]"); a(f"global_load_dwordx2 {v(xr+2,2)}, {v(t2)}, s[36:37] offset:32")
    a("s_mov_b32 s16, s42"); a("s_mov_b32 s17, s43")
    for i in range(16):
        if noq == 2: a(f"buffer_load_dwordx4 {v(W+4*i,4)}, {v(vo)}, s[16:19], s19 offen offset:4000") if False else a(f"global_load_dword {v(W+4*i)}, {v(t2)}, s[36:37]")
        else: a(f"buffer_load_dwordx4 {v(W+4*i,4)}, {v(vo)}, s[16:19], s32 offen {qpol}")
        if i < 15: a("s_add_u32 s32, s32, 0x20000")
    for i in range(4): a(f"v_mov_b32 {v(CL+i)}, -1")
    a("s_lshl_b32 s29, s20, 16"); a("s_lshl_b32 s30, s21, 10"); a("s_add_u32 s29, s29, s30"); a(f"s_add_u32 s29, s29, {WS_OP}")
    a(f"v_lshl_add_u32 {v(CL+4)}, v0, 4, s29"); a(f"v_add_u32 {v(CL+5)}, 0x8000, {v(CL+4)}")
    a("s_lshl_b32 s29, s20, 10"); a("s_lshl_b32 s30, s21, 3"); a("s_add_u32 s29, s29, s30"); a(f"s_add_u32 s29, s29, {WS_ML}")
    a(f"v_lshl_add_u32 {v(CL+6)}, v0, 8, s29")
    a("s_lshl_b32 s29, s20, 12"); a("s_lshl_b32 s30, s31, 11"); a("s_add_u32 s29, s29, s30"); a("s_lshl_b32 s30, s34, 7"); a("s_add_u32 s29, s29, s30")
    a(f"s_add_u32 s29, s29, {WS_YP}")
    if rep8:
        a(f"v_lshrrev_b32 {v(CL+7)}, 3, v0"); a(f"v_lshlrev_b32 {v(CL+7)}, 15, {v(CL+7)}"); a(f"v_and_b32 {v(CL+8)}, 7, v0"); a(f"v_lshlrev_b32 {v(CL+8)}, 4, {v(CL+8)}")
        a(f"v_add3_u32 {v(CL+7)}, {v(CL+7)}, {v(CL+8)}, s29")
    else: a(f"v_lshl_add_u32 {v(CL+7)}, v0, 4, s29")
    a(f"global_load_dword {v(CL+20)}, {v(t2)}, s[36:37]" if noclr else f"global_store_dwordx4 {v(CL+4)}, {v(CL,4)}, s[46:47] sc1")
    a(f"global_load_dword {v(CL+20)}, {v(t2)}, s[36:37]" if noclr else f"global_store_dwordx4 {v(CL+5)}, {v(CL,4)}, s[46:47] sc1")
    a("s_mov_b64 exec, 0xf")
    a(f"global_load_dword {v(CL+20)}, {v(t2)}, s[36:37]" if noclr else f"global_store_dwordx2 {v(CL+6)}, {v(CL,2)}, s[46:47] sc1")
    a("s_mov_b64 exec, -1" if rep8 else "s_mov_b64 exec, 0xff")
    a(f"global_load_dword {v(CL+20)}, {v(t2)}, s[36:37]" if noclr else f"global_store_dwordx4 {v(CL+7)}, {v(CL,4)}, s[46:47] sc1")
    a("s_mov_b64 exec, -1")
    a("s_mov_b32 s22, 0")
    kv_setup()
    loadK(KA); loadV(VA)
    a("s_barrier")
    late_setup()
    a(f"v_lshrrev_b32 {v(t2)}, 3, {v(t0)}"); a(f"v_lshlrev_b32 {v(vo)}, 9, {v(t2)}"); a(f"v_lshl_add_u32 {v(vo)}, {v(t1)}, 7, {v(vo)}")
    a(f"v_and_b32 {v(t2)}, 7, {v(t0)}"); a(f"v_lshl_add_u32 {v(vo)}, {v(t2)}, 2, {v(vo)}")
    RA = CL + 8
    a("s_lshl_b32 s29, s31, 9"); a(f"v_lshl_add_u32 {v(RA)}, {v(t0)}, 5, s29")
    GS = CL + 9
    a(f"v_lshrrev_b32 {v(t2)}, 4, v0"); a(f"v_lshlrev_b32 {v(GS)}, 6, {v(t1)}"); a(f"v_lshl_add_u32 {v(GS)}, {v(t2)}, 4, {v(GS)}")
    a("s_lshl_b32 s29, s20, 13"); a(f"s_add_u32 s29, s29, {WS_QG}"); a("s_lshl_b32 s30, s31, 12"); a("s_add_u32 s30, s30, s29"); a("s_lshl_b32 s33, s34, 8"); a("s_add_u32 s30, s30, s33")
    a(f"v_add_u32 {v(GS)}, s30, {v(GS)}")
    GL = CL + 10
    a(f"v_lshl_add_u32 {v(GL)}, v0, 4, s29"); a(f"v_add_u32 {v(GL+1)}, 0x1000, {v(GL)}")
    a("s_lshl_b32 s30, s20, 8"); a(f"v_and_b32 {v(t2)}, 31, v0"); a(f"v_lshl_add_u32 {v(GL+2)}, {v(t2)}, 3, s30")
    a("s_lshl_b32 s33, s21, 3"); a("s_add_u32 s33, s33, s30"); a(f"v_mov_b32 {v(GL+3)}, s33")
    a("s_waitcnt vmcnt(36)")
    for i in range(4): unpack(a, X[2*i], X[2*i+1], xr + i)
    ln_stats(a, X, mb, sq, rc, t0, t1, t2)
    for e in range(4):
        ln_pair(a, X[e], X[e+4], mb, sq, rc, xr + e, t0, t1, t2, t3)
        a(f"ds_write_b32 {v(vo)}, {v(xr+e)} offset:{LDS_XN + 32*e}")
    a("s_waitcnt lgkmcnt(0)")
    a(f"ds_read_b128 {v(X[0],4)}, {v(RA)} offset:{LDS_XN}"); a(f"ds_read_b128 {v(X[4],4)}, {v(RA)} offset:{LDS_XN+16}")
    AC = CL + 16
    for c in range(8): a(f"v_mov_b32 {v(AC+c)}, 0")
    a("s_add_u32 s62, s61, 0x9e3779b9")
    GD = CL + 24
    a(f"v_mov_b32 {v(GD+1)}, s62"); a(f"v_mov_b32 {v(GD+3)}, s62"); a(f"v_mov_b32 {v(GD+4)}, s63"); a(f"v_mov_b32 {v(GD+5)}, s62")
    a("s_waitcnt lgkmcnt(0)")
    for p in range(8):
        a(f"s_waitcnt vmcnt({20 + 14 - 2*p})")
        for cc in range(4):
            a(f"v_perm_b32 {v(T+2*cc)}, {v(W+8*p+4+cc)}, {v(W+8*p+cc)}, s25")
            a(f"v_perm_b32 {v(T+2*cc+1)}, {v(W+8*p+4+cc)}, {v(W+8*p+cc)}, s26")
        for c in range(8): a(f"v_dot2_f32_bf16 {v(AC+c)}, {v(T+c)}, {v(X[p])}, {v(AC+c)}")
    a.nop(3)
    fold8(AC)
    a(f"v_mov_b32 {v(GD)}, {v(AC)}"); a(f"v_mov_b32 {v(GD+2)}, {v(AC+1)}")
    a("s_mov_b32 s4, 0x000f000f"); a("s_mov_b32 s5, 0x000f000f")
    a("s_waitcnt vmcnt(16)")
    a("s_mov_b64 exec, s[4:5]")
    a(f"global_store_dwordx4 {v(GS)}, {v(GD,4)}, s[46:47] sc1")
    a("s_mov_b64 exec, 1")
    a(f"global_store_dwordx2 {v(GL+3)}, {v(GD+4,2)}, s[46:47] offset:{WS_XG} sc1")
    a("s_mov_b64 exec, -1")
    stamp()
    a("s_mov_b32 s30, 0"); a("s_mov_b32 s31, 0")
    GA = KB
    if xgfirst:
        a.label(f"{name}_pollx")
        a(f"global_load_dwordx2 {v(GA+32,2)}, {v(GL+2)}, s[46:47] offset:{WS_XG} sc1")
        a("s_add_u32 s30, s30, 1")
        a("s_waitcnt vmcnt(0)")
        a(f"v_cmp_ne_u32 vcc, s62, {v(GA+33)}")
        a(f"s_cbranch_vccz {name}_poll")
        a(f"s_cmp_gt_u32 s30, {SPIN_MAX}"); a(f"s_cbranch_scc1 {name}_polled")
        if qsleep: a(f"s_sleep {qsleep}")
        a(f"s_branch {name}_pollx")
        a.label(f"{name}_poll")
        for i in range(8):
            a(f"global_load_dwordx4 {v(GA+4*i,4)}, {v(GL + (i >> 2))}, s[46:47] offset:{1024*(i&3)} sc1")
        a("s_add_u32 s30, s30, 1")
        a("s_waitcnt vmcnt(0)")
        for i in range(16): a(f"v_xor_b32 {v(GA+2*i+1)}, s62, {v(GA+2*i+1)}")
        for i in range(0, 16, 4):
            a(f"v_or3_b32 {v(GA+2*i+1)}, {v(GA+2*i+1)}, {v(GA+2*i+3)}, {v(GA+2*i+5)}"); a(f"v_or_b32 {v(GA+2*i+1)}, {v(GA+2*i+1)}, {v(GA+2*i+7)}")
        a(f"v_or3_b32 {v(GA+1)}, {v(GA+1)}, {v(GA+9)}, {v(GA+17)}"); a(f"v_or_b32 {v(GA+1)}, {v(GA+1)}, {v(GA+25)}")
        a(f"v_cmp_ne_u32 vcc, 0, {v(GA+1)}")
        a(f"s_cmp_gt_u32 s30, {SPIN_MAX}"); a(f"s_cbranch_scc1 {name}_polled")
        a(f"s_cbranch_vccnz {name}_poll")
    else:
        if noq: a(f"s_branch {name}_polled")
        a.label(f"{name}_poll")
        if qdelay: a(f"s_sleep {qdelay}")
        for i in range(8):
            a(f"s_bitcmp1_b32 s31, {i}"); a(f"s_cbranch_scc1 {name}_qk{i}")
            a(f"global_load_dwordx4 {v(GA+4*i,4)}, {v(GL + (i >> 2))}, s[46:47] offset:{1024*(i&3)} sc1")
            a.label(f"{name}_qk{i}")
        if not xglast: a(f"global_load_dwordx2 {v(GA+32,2)}, {v(GL+2)}, s[46:47] offset:{WS_XG} sc1")
        a("s_add_u32 s30, s30, 1")
        a("s_waitcnt vmcnt(0)")
        for i in range(8):
            a(f"v_cmp_ne_u32 vcc, s62, {v(GA+4*i+1)}"); a(f"v_cmp_ne_u32 s[4:5], s62, {v(GA+4*i+3)}")
            a("s_or_b64 vcc, vcc, s[4:5]"); a(f"s_cselect_b32 s34, 0, {1<<i}"); a("s_or_b32 s31, s31, s34")
        if xglast:
            a(f"s_cmp_gt_u32 s30, {SPIN_MAX}"); a(f"s_cbranch_scc1 {name}_polled")
            a("s_cmp_eq_u32 s31, 0xff"); a(f"s_cbranch_scc0 {name}_poll")
            a.label(f"{name}_pollx")
            a(f"global_load_dwordx2 {v(GA+32,2)}, {v(GL+2)}, s[46:47] offset:{WS_XG} sc1")
            a("s_add_u32 s30, s30, 1")
            a("s_waitcnt vmcnt(0)")
            a(f"v_cmp_ne_u32 vcc, s62, {v(GA+33)}")
            a(f"s_cmp_gt_u32 s30, {SPIN_MAX}"); a(f"s_cbranch_scc1 {name}_polled")
            a(f"s_cbranch_vccnz {name}_pollx")
        else:
            a(f"v_cmp_ne_u32 vcc, s62, {v(GA+33)}")
            a(f"s_cmp_gt_u32 s30, {SPIN_MAX}"); a(f"s_cbranch_scc1 {name}_polled")
            a(f"s_cbranch_vccnz {name}_poll")
            a("s_cmp_eq_u32 s31, 0xff"); a(f"s_cbranch_scc0 {name}_poll")
    a.label(f"{name}_polled")
    stamp()
    for i in range(4):
        a(f"v_add_f32 {v(GA+4*i)}, {v(GA+4*i)}, {v(GA+16+4*i)}"); a(f"v_add_f32 {v(GA+4*i+2)}, {v(GA+4*i+2)}, {v(GA+16+4*i+2)}")
        a(f"v_cvt_pk_bf16_f32 {v(T+4+i)}, {v(GA+4*i)}, {v(GA+4*i+2)}")
    a(f"v_lshlrev_b32 {v(t0)}, 2, v0")
    a(f"ds_write2st64_b32 {v(t0)}, {v(T+4)}, {v(T+5)} offset0:{LDS_Q//256} offset1:{LDS_Q//256+1}")
    a(f"ds_write2st64_b32 {v(t0)}, {v(T+6)}, {v(T+7)} offset0:{LDS_Q//256+2} offset1:{LDS_Q//256+3}")
    a(f"v_cmp_ne_u32 vcc, s63, {v(GA+32)}")
    a("s_cmp_eq_u64 vcc, 0"); a("s_cselect_b32 s29, 1, 0")
    a(f"v_mov_b32 {v(t0)}, 0"); a(f"v_mov_b32 {v(t1)}, s29")
    a(f"ds_write_b32 {v(t0)}, {v(t1)} offset:{LDS_FL}")
    a("s_waitcnt lgkmcnt(0)")
    a("s_barrier")
    tail_loads()
    if prio: a("s_setprio 0")
    init_state()
    a(f"s_branch {name}_join")
    a.label(f"{name}_w0wait")
    if loopbar:
        for i in range(8): a("s_barrier")
    a(f"s_branch {name}_last")
    a.label(f"{name}_tg0")
    if codewarm:
        a("s_getpc_b64 s[96:97]")
        a.label(f"{name}_pc0")
        a(f"s_sub_u32 s96, s96, {name}_pc0-{name}_tgd"); a("s_subb_u32 s97, s97, 0")
        for i in range(codewarm):
            a(f"s_load_dword s98, s[96:97], {64*i}")
            if i % 8 == 7: a("s_waitcnt lgkmcnt(0)")
        a("s_waitcnt lgkmcnt(0)")
    a(f"v_lshlrev_b32 {v(t0)}, 4, v0"); a("s_mov_b32 s30, 0")
    a.label(f"{name}_tg")
    a(f"global_load_dwordx4 {v(GA,4)}, {v(t0)}, s[46:47] offset:{WS_XG} sc1")
    a(f"global_load_dwordx4 {v(GA+4,4)}, {v(t0)}, s[46:47] offset:{WS_XG+1024} sc1")
    a("s_add_u32 s30, s30, 1")
    a("s_waitcnt vmcnt(0)")
    for i in (1, 3, 5, 7): a(f"v_xor_b32 {v(GA+i)}, s61, {v(GA+i)}")
    a(f"v_or3_b32 {v(GA+1)}, {v(GA+1)}, {v(GA+3)}, {v(GA+5)}"); a(f"v_or_b32 {v(GA+1)}, {v(GA+1)}, {v(GA+7)}")
    a(f"v_cmp_ne_u32 vcc, 0, {v(GA+1)}")
    a(f"s_cmp_gt_u32 s30, {SPIN_MAX}"); a(f"s_cbranch_scc1 {name}_tgd")
    a(f"s_cbranch_vccnz {name}_tg")
    a(f"s_branch {name}_tgd")
    nst[0] = nst_end
    return LDS_END

def build(fn, **kw):
    a = Asm(); name = KN + "_kernel"
    lds = gen_fused(a, name, **kw)
    out = f"; @launch grid=(256,1,1) block=(512,1,1) lds={lds}\n" + '.amdgcn_target "amdgcn-amd-amdhsa--gfx950"\n.text\n' + a.text()
    out += '.section .rodata,"a"\n' + kd(name, a.maxv + 1, max(a.maxs + 1, 16))
    open(fn, "w").write(out)

if __name__ == "__main__":
    RP = [3,3,2,2,1,1,0,0,0]
    build("v13.s", rprio=RP)
    build("r_a.s", rprio=RP, dup=True)
```

```python
import sys
from asmlib import *
from gen import allreduce, rne1, rne2, unpack, ln_stats, ln_pair, kernel_head, kd, transp_mfma, LOG2E, SCALE, KN
WS_EP = 0x0; WS_XG = 0x400; WS_QG = 0x10000; WS_OP = 0x40000; WS_ML = 0xC0000; WS_YP = 0xD0000
WS_STAMP = 0x10000000
SPIN_MAX = 400000

def ln_stats_fast(a, X, mb, sq, rc, t0, t1, t2, t3, D, sp):
    a(f"v_readfirstlane_b32 s{sp}, {v(X[0])}")
    a(f"s_mov_b32 s{sp+1}, s{sp}")
    for i in range(0, 8, 2): a(f"v_pk_add_f32 {v(D+i,2)}, {v(X[i],2)}, s[{sp}:{sp+1}] neg_lo:[0,1] neg_hi:[0,1]")
    a(f"v_pk_mul_f32 {v(D+8,2)}, {v(D,2)}, {v(D,2)}"); a(f"v_pk_add_f32 {v(D+10,2)}, {v(D,2)}, {v(D+2,2)}")
    a(f"v_pk_fma_f32 {v(D+8,2)}, {v(D+2,2)}, {v(D+2,2)}, {v(D+8,2)}"); a(f"v_pk_add_f32 {v(D,2)}, {v(D+4,2)}, {v(D+6,2)}")
    a(f"v_pk_fma_f32 {v(D+8,2)}, {v(D+4,2)}, {v(D+4,2)}, {v(D+8,2)}"); a(f"v_pk_add_f32 {v(D+10,2)}, {v(D+10,2)}, {v(D,2)}")
    a(f"v_pk_fma_f32 {v(D+8,2)}, {v(D+6,2)}, {v(D+6,2)}, {v(D+8,2)}")
    a(f"v_add_f32 {v(t0)}, {v(D+10)}, {v(D+11)}"); a(f"v_add_f32 {v(t1)}, {v(D+8)}, {v(D+9)}")
    a(f"v_permlane32_swap_b32 {v(t0)}, {v(t1)}"); a(f"v_add_f32 {v(t0)}, {v(t0)}, {v(t1)}")
    allreduce(a, "v_add_f32", t0, t2, lanes=32)
    a(f"v_readlane_b32 s{sp+3}, {v(t0)}, 0"); a(f"v_readlane_b32 s{sp+2}, {v(t0)}, 32")
    a(f"v_mov_b32 {v(t2)}, {f32hex(1/512)}")
    a(f"v_mul_f32 {v(t0)}, s{sp+3}, {v(t2)}")
    a(f"v_mul_f32 {v(t1)}, s{sp+2}, {v(t2)}")
    a(f"v_add_f32 {v(t3)}, s{sp}, {v(t0)}")
    a(f"v_fma_f32 {v(t1)}, -{v(t0)}, {v(t0)}, {v(t1)}")
    a(f"v_max_f32 {v(t1)}, 0, {v(t1)}")
    rne2(a, mb, t1, t3, t1, t2)
    a(f"v_add_f32 {v(t1)}, {f32hex(1e-5)}, {v(t1)}")
    rne1(a, t1, t1, t2)
    a(f"v_sqrt_f32 {v(t1)}, {v(t1)}")
    rne1(a, sq, t1, t2)
    a(f"v_rcp_f32 {v(rc)}, {v(sq)}")

def gen_fused(a, name, kvpol="nt", stamps=False, first=4, prio=True, wopol="nt", qpol="nt", ps2=0, ps3=0, local=True, ldsround=7, loopbar=False, tailround=-1, noq=0, notail=False, stop=False, blockmap=False, kfirst=False, tailpart=3, vpol=None, rep8=False, qsleep=8, xgfirst=False, xglast=True, qdelay=0, rot=0, noclr=False, dup=False, yst='sc1', yld='sc1', gmap=0, fastln=True, pk=True, fine=False, rprio=None, nocomp=False, bare=False, p3x=True, dbgst=False, codewarm=0, qx=0, kvx=0):
    if vpol is None: vpol = kvpol
    vK0, vK1, vV0, vV1 = 1, 2, 3, 4
    m, negm, l, alR, mnew, al, tm = 5, 6, 7, 8, 9, 10, 11
    S = 12; P = 20; C4 = 24; Q = 28; O = 44; T = 76
    DA = 108
    KA, VA, KB, VB = 112, 144, 176, 208
    M = 240
    WO = M; W1, B1, W2 = M+8, M+10, M+12; XR = M+14; DUM = M+15
    LDS_XN = 0; LDS_Q = 1024; LDS_FL = 2048; LDS_ML = 2304
    LDS_C = 2560; LDS_R2 = LDS_C + 2048; LDS_FR = LDS_R2 + 1024; LDS_H = LDS_FR + 256
    LDS_OM = LDS_H + 2048; LDS_R1 = LDS_OM + 16384; LDS_D = LDS_R1 + 8192; LDS_END = LDS_D + 7*16384
    assert LDS_OM % 256 == 0 and LDS_R1 // 256 + 28 < 256 and LDS_R2 % 256 == 0
    nst = [0]
    def stamp():
        if stamps:
            a(f"s_memrealtime s[{64+2*nst[0]}:{65+2*nst[0]}]"); nst[0] += 1
    def tail_loads():
        t0, t1, t2 = C4, C4+1, C4+2
        if notail: return
        a("s_lshl_b32 s29, s20, 19"); a("s_and_b32 s30, s21, 1"); a("s_lshl_b32 s30, s30, 18"); a("s_add_u32 s29, s29, s30")
        a("s_lshl_b32 s30, s3, 10"); a("s_add_u32 s29, s29, s30"); a("s_lshr_b32 s30, s21, 1"); a("s_lshl_b32 s30, s30, 6"); a("s_add_u32 s29, s29, s30")
        a(f"v_lshrrev_b32 {v(t0)}, 2, v0"); a(f"v_lshlrev_b32 {v(t0)}, 13, {v(t0)}"); a(f"v_and_b32 {v(t1)}, 3, v0")
        a(f"v_lshl_add_u32 {v(t0)}, {v(t1)}, 4, {v(t0)}"); a(f"v_add_u32 {v(t0)}, s29, {v(t0)}"); a(f"v_add_u32 {v(t1)}, 0x20000, {v(t0)}")
        a("s_waitcnt lgkmcnt(0)")
        if tailpart & 1:
            a(f"global_load_dwordx4 {v(WO,4)}, {v(t0)}, s[48:49] {wopol}"); a(f"global_load_dwordx4 {v(WO+4,4)}, {v(t1)}, s[48:49] {wopol}")
        if not tailpart & 2: return
        a("s_lshl_b32 s29, s3, 8"); a(f"v_lshl_add_u32 {v(t0)}, v0, 2, s29")
        a(f"v_add_u32 {v(t1)}, 2048, {v(t0)}"); a(f"v_min_u32 {v(t1)}, {895*4}, {v(t1)}")
        a(f"v_lshrrev_b32 {v(t2)}, 1, {v(t0)}")
        for (r, sp) in ((W1, "s[52:53]"), (B1, "s[54:55]"), (W2, "s[56:57]")):
            a(f"global_load_dword {v(r)}, {v(t0)}, {sp}"); a(f"global_load_dword {v(r+1)}, {v(t1)}, {sp}")
        a(f"global_load_ushort {v(XR)}, {v(t2)}, s[36:37]")
        a(f"global_load_ushort {v(DUM)}, {v(t2)}, s[50:51]")
    def init_state():
        a(f"v_mov_b32 {v(m)}, 0xff800000"); a(f"v_mov_b32 {v(l)}, 0"); a(f"v_mov_b32 {v(negm)}, 0")
        for i in range(32): a(f"v_mov_b32 {v(O+i)}, 0")
        a(f"v_bfe_u32 {v(tm)}, v0, 2, 2"); a(f"v_lshrrev_b32 {v(al)}, 4, v0")
        a(f"v_lshlrev_b32 {v(tm)}, 8, {v(tm)}"); a(f"v_lshl_add_u32 {v(tm)}, {v(al)}, 4, {v(tm)}")
        a("s_waitcnt lgkmcnt(0)")
        a("s_load_dword s60, s[58:59], 0")
        a("s_add_u32 s61, s61, 0x9e3779b9")
    def late_setup():
        a("s_load_dwordx2 s[48:49], s[0:1], 32")
        a("s_load_dwordx8 s[52:59], s[0:1], 48")
        a("s_load_dwordx2 s[50:51], s[0:1], 80")
        a(f"s_load_dword s61, s[46:47], {WS_EP}")
        a("s_getreg_b32 s63, hwreg(HW_REG_XCC_ID, 0, 4)")
        a("s_mov_b32 s25, 0x05040100"); a("s_mov_b32 s26, 0x07060302")
        a(f"s_mov_b32 s27, {f32hex(LOG2E)}"); a(f"s_mov_b32 s28, {f32hex(SCALE)}")
    def kv_setup():
        a("s_lshl_b32 s29, s3, 13")
        if blockmap:
            a("s_mul_i32 s29, s3, 0x12000"); a("s_sub_u32 s29, s29, 0x10000"); a("s_max_i32 s29, s29, 0")
        if rot:
            a(f"s_mul_i32 s30, s2, {rot}"); a("s_lshl_b32 s30, s30, 13"); a("s_add_u32 s29, s29, s30"); a("s_and_b32 s29, s29, 0x7ffff")
        a(f"v_and_b32 {v(vK0)}, 3, v0"); a(f"v_lshlrev_b32 {v(vK0)}, 10, {v(vK0)}")
        a(f"v_bfe_u32 {v(tm)}, v0, 2, 2"); a(f"v_lshl_add_u32 {v(vK0)}, {v(tm)}, 8, {v(vK0)}")
        a(f"v_lshrrev_b32 {v(tm)}, 4, v0"); a(f"v_lshl_add_u32 {v(vK0)}, {v(tm)}, 4, {v(vK0)}")
        a(f"v_add_u32 {v(vK0)}, s29, {v(vK0)}"); a(f"v_add_u32 {v(vK1)}, 0x1000, {v(vK0)}")
        a(f"v_lshlrev_b32 {v(vV0)}, 4, v0"); a(f"v_add_u32 {v(vV0)}, s29, {v(vV0)}"); a(f"v_add_u32 {v(vV1)}, 0x1000, {v(vV0)}")
        a("s_lshl_b32 s29, s20, 24"); a(f"s_xor_b32 s30, s21, {kvx}"); a("s_lshl_b32 s30, s30, 19"); a("s_add_u32 s29, s29, s30")
        a("s_mov_b32 s10, 0x80000"); a("s_mov_b32 s11, 0x20000"); a("s_mov_b32 s14, 0x80000"); a("s_mov_b32 s15, 0x20000")
        a("s_waitcnt lgkmcnt(0)")
        a("s_add_u32 s8, s38, s29"); a("s_addc_u32 s9, s39, 0")
        a("s_add_u32 s12, s40, s29"); a("s_addc_u32 s13, s41, 0")
    def fold8(A):
        for c in range(4): a(f"v_permlane32_swap_b32 {v(A+c)}, {v(A+c+4)}")
        for c in range(4): a(f"v_add_f32 {v(A+c)}, {v(A+c)}, {v(A+c+4)}")
        for c in range(2): a(f"v_permlane16_swap_b32 {v(A+c)}, {v(A+c+2)}")
        for c in range(2): a(f"v_add_f32 {v(A+c)}, {v(A+c)}, {v(A+c+2)}")
        for rr in (8, 4):
            for c in range(2): a(f"v_add_f32_dpp {v(A+c)}, {v(A+c)}, {v(A+c)} row_ror:{rr} {DPPM}")
    kernel_head(a, name)
    a("s_cmp_ge_u32 s2, 256"); a(f"s_cbranch_scc1 {name}_end")
    stamp()
    a("s_load_dwordx8 s[36:43], s[0:1], 0")
    a("s_load_dwordx2 s[46:47], s[0:1], 96")
    a("v_lshrrev_b32 v1, 6, v0")
    a("v_readfirstlane_b32 s3, v1")
    a("v_and_b32 v0, 63, v0")
    if gmap == 0:
        a("s_and_b32 s20, s2, 7"); a("s_lshr_b32 s21, s2, 3")
    else:
        a("s_lshr_b32 s20, s2, 5"); a("s_and_b32 s21, s2, 31")
    a("s_cmp_eq_u32 s3, 0"); a(f"s_cbranch_scc1 {name}_w0")
    a(f"s_mov_b32 s22, {0x2000 if blockmap else 0xe000}")
    kv_setup()
    cnt = [0]
    def hook():
        cnt[0] += 1
        if cnt[0] == first + 1:
            late_setup()
            a("s_barrier")
    VQ = []
    def adv(r0, r1):
        a(f"v_add_u32 {v(r0)}, s22, {v(r0)}")
        if rot:
            a(f"v_and_b32 {v(r0)}, 0x7ffff, {v(r0)}"); a(f"v_add_u32 {v(r1)}, 0x1000, {v(r0)}")
        else: a(f"v_add_u32 {v(r1)}, s22, {v(r1)}")
    def wait_for(lab):
        if lab not in VQ: return
        idx = max(i for i, x in enumerate(VQ) if x == lab)
        n = len(VQ) - 1 - idx
        a(f"s_waitcnt vmcnt({min(n, 63)})")
        del VQ[:idx+1]
    def dmaK(lab):
        for j in range(8):
            a(f"s_add_u32 m0, s24, {j*1024 - (j&3)*64}")
            a(f"buffer_load_dwordx4 {v(vK0 if j < 4 else vK1)}, s[8:11], 0 offen offset:{(j&3)*64} {kvpol} lds"); VQ.append(lab)
        adv(vK0, vK1)
    def dmaV(lab):
        for j in range(8):
            if (j & 3) == 0: a(f"s_add_u32 m0, s24, {8192 + (j>>2)*4096}")
            a(f"buffer_load_dwordx4 {v(vV0 if j < 4 else vV1)}, s[12:15], 0 offen offset:{(j&3)*1024} {vpol} lds"); VQ.append(lab)
        adv(vV0, vV1)
    def loadK(K, pc=False, lab="x"):
        for j in range(8):
            if pc: hook()
            VQ.append(lab)
            a(f"buffer_load_dwordx4 {v(K+4*j,4)}, {v(vK0 if j < 4 else vK1)}, s[8:11], 0 offen offset:{(j&3)*64} {kvpol}")
        adv(vK0, vK1)
    def loadV(V, pc=False, lab="x"):
        for j in range(8):
            if pc: hook()
            VQ.append(lab)
            a(f"buffer_load_dwordx4 {v(V+4*j,4)}, {v(vV0 if j < 4 else vV1)}, s[12:15], 0 offen offset:{(j&3)*1024} {vpol}")
        adv(vV0, vV1)
    if stamps:
        a("s_mov_b64 s[66:67], 0"); a("s_mov_b64 s[68:69], 0")
    nst_save = nst[0]; nst[0] += 2
    loadK(KA, True, "K0"); loadV(VA, True, "V0"); loadK(KB, True, "K1"); loadV(VB, True, "V1")
    a("s_lshl_b32 s24, s3, 14"); a(f"s_add_u32 s24, s24, {LDS_D - 16384}")
    if ldsround < 9:
        dmaK(f"K{ldsround}"); dmaV(f"V{ldsround}")
    if tailround < 0:
        tail_loads(); VQ.extend(["t"] * (0 if notail else (2 if tailpart & 1 else 0) + (8 if tailpart & 2 else 0)))
    init_state()
    a("s_barrier")
    a.label(f"{name}_join")
    for t in range(4): a(f"ds_read_b128 {v(Q+4*t,4)}, {v(tm)} offset:{LDS_Q+64*t}")
    a(f"v_mov_b32 {v(al)}, 0")
    a(f"ds_read_b32 {v(al)}, {v(al)} offset:{LDS_FL}")
    a("s_waitcnt lgkmcnt(0)")
    a(f"v_readfirstlane_b32 s62, {v(al)}")
    a("s_lshl_b32 s60, s60, 16")
    stamp()
    a("s_cmp_eq_u32 s3, 0"); a(f"s_cbranch_scc1 {name}_w0wait")
    a(f"v_lshl_add_u32 {v(DA)}, v0, 4, s24")
    if dup:
        a("s_mov_b32 s99, 0")
        a.label(f"{name}_again")
    NR = 9
    def tile(r):
        if nocomp:
            real = a
            class F:
                def __call__(self, s_):
                    if s_.startswith(("v_mfma", "v_cvt", "v_mul", "v_max", "v_exp", "v_fma", "v_perm", "v_add_f32", "v_lshlrev_b32", "v_and_b32", "v_cmp", "s_cbranch_vccz", "v_mov", "v_sub")): return
                    real(s_)
                def __getattr__(self, n): return getattr(real, n)
            return tile2(r, F())
        return tile2(r, a)
    def tile2(r, a):
        K, V = (KA, VA) if r % 2 == 0 else (KB, VB)
        nxt = r + 2
        fromlds = r == ldsround
        if r == NR - 1:
            a.fence(); a.label(f"{name}_last")
        if rprio and (r == 0 or rprio[r] != rprio[r-1]): a(f"s_setprio {rprio[r]}")
        if fromlds: a("s_waitcnt lgkmcnt(0)")
        else: wait_for(f"K{r}")
        for t in range(4):
            for g in range(2):
                c = "0" if t == 0 else v(S+4*g, 4)
                a(f"v_mfma_f32_16x16x32_bf16 {v(S+4*g,4)}, {v(K+16*g+4*t,4)}, {v(Q+4*t,4)}, {c}")
        if nxt == ldsround:
            wait_for(f"K{nxt}")
            for j in range(8): a(f"ds_read_b128 {v(K+4*j,4)}, {v(DA)} offset:{1024*j}")
        elif nxt < NR: loadK(K, lab=f"K{nxt}")
        for i in range(4): a(f"v_cvt_pk_bf16_f32 {v(C4+i)}, {v(S+2*i)}, {v(S+2*i+1)}")
        for i in range(4): unpack(a, S+2*i, S+2*i+1, C4+i)
        for i in range(8): a(f"v_mul_f32 {v(S+i)}, s28, {v(S+i)}")
        for i in range(4): a(f"v_cvt_pk_bf16_f32 {v(C4+i)}, {v(S+2*i)}, {v(S+2*i+1)}")
        for i in range(4): unpack(a, S+2*i, S+2*i+1, C4+i)
        a(f"v_max3_f32 {v(mnew)}, {v(m)}, {v(S)}, {v(S+1)}")
        for i in range(1, 4): a(f"v_max3_f32 {v(mnew)}, {v(mnew)}, {v(S+2*i)}, {v(S+2*i+1)}")
        a(f"v_cmp_gt_f32 vcc, {v(mnew)}, {v(m)}")
        a(f"s_cbranch_vccz {name}_skip{r}")
        a(f"v_mov_b32 {v(tm)}, {v(mnew)}"); a(f"v_permlane16_swap_b32 {v(mnew)}, {v(tm)}"); a(f"v_max_f32 {v(mnew)}, {v(mnew)}, {v(tm)}")
        a(f"v_mov_b32 {v(tm)}, {v(mnew)}"); a(f"v_permlane32_swap_b32 {v(mnew)}, {v(tm)}"); a(f"v_max_f32 {v(mnew)}, {v(mnew)}, {v(tm)}")
        a(f"v_sub_f32 {v(al)}, {v(m)}, {v(mnew)}"); a(f"v_mul_f32 {v(al)}, s27, {v(al)}"); a(f"v_exp_f32 {v(al)}, {v(al)}")
        a(f"v_mov_b32 {v(m)}, {v(mnew)}")
        a(f"v_mul_f32_e64 {v(negm)}, -{v(mnew)}, s27")
        a(f"v_mul_f32 {v(l)}, {v(l)}, {v(al)}")
        for rr in range(4): a(f"v_mov_b32_dpp {v(alR)}, {v(al)} row_newbcast:{4*rr} row_mask:{hex(1<<rr)} bank_mask:0xf")
        for e in range(8): a(f"v_mul_f32 {v(O+4*e)}, {v(alR)}, {v(O+4*e)}")
        a.label(f"{name}_skip{r}")
        for i in range(8): a(f"v_fma_f32 {v(S+i)}, {v(S+i)}, s27, {v(negm)}")
        for i in range(8): a(f"v_exp_f32 {v(S+i)}, {v(S+i)}")
        for i in range(4): a(f"v_cvt_pk_bf16_f32 {v(P+i)}, {v(S+2*i)}, {v(S+2*i+1)}")
        for i in range(4): a(f"v_add_f32 {v(C4+i)}, {v(S+2*i)}, {v(S+2*i+1)}")
        a(f"v_add_f32 {v(C4)}, {v(C4)}, {v(C4+1)}"); a(f"v_add_f32 {v(C4+2)}, {v(C4+2)}, {v(C4+3)}")
        a(f"v_add_f32 {v(C4)}, {v(C4)}, {v(C4+2)}"); a(f"v_add_f32 {v(l)}, {v(l)}, {v(C4)}")
        if not fromlds: wait_for(f"V{r}")
        def pre():
            if nxt == ldsround:
                wait_for(f"V{nxt}")
                for j in range(8): a(f"ds_read_b128 {v(V+4*j,4)}, {v(DA)} offset:{8192+1024*j}")
            elif nxt < NR: loadV(V, lab=f"V{nxt}")
        transp_mfma(a, V, T, P, O, 25, 26, between=pre)
        if tailround == 100 and r < 7:
            a(f"s_cmp_lg_u32 s3, {r+1}"); a(f"s_cbranch_scc1 {name}_tl{r}")
            tail_loads()
            a.label(f"{name}_tl{r}")
        if r == tailround:
            tail_loads(); VQ.extend(["t"] * (0 if notail else (2 if tailpart & 1 else 0) + (8 if tailpart & 2 else 0)))
        if r < NR - 1 and loopbar: a("s_barrier")
    for r in range(NR): tile(r)
    if dup:
        a.fence()
        a("s_cmp_eq_u32 s3, 0"); a(f"s_cbranch_scc1 {name}_nodup")
        a("s_cmp_eq_u32 s99, 1"); a(f"s_cbranch_scc1 {name}_nodup")
        a("s_mov_b32 s99, 1")
        kv_setup()
        loadK(KA); loadV(VA); loadK(KB); loadV(VB); dmaK("x"); dmaV("x"); tail_loads()
        a(f"v_mov_b32 {v(m)}, 0xff800000"); a(f"v_mov_b32 {v(l)}, 0"); a(f"v_mov_b32 {v(negm)}, 0")
        for i in range(32): a(f"v_mov_b32 {v(O+i)}, 0")
        a(f"s_branch {name}_again")
        a.label(f"{name}_nodup")
    stamp()
    t0, t1, t2, t3 = C4, C4+1, C4+2, C4+3
    if stop:
        for i in range(5): stamp()
        a(f"s_branch {name}_fin2")
        nst[0] -= 5
    a.fence()
    a("s_cmp_eq_u32 s3, 0"); a(f"s_cbranch_scc1 {name}_tg0")
    a.label(f"{name}_tgd")
    a(f"v_mov_b32 {v(tm)}, {v(l)}"); a(f"v_permlane16_swap_b32 {v(l)}, {v(tm)}"); a(f"v_add_f32 {v(l)}, {v(l)}, {v(tm)}")
    a("s_lshl_b32 s29, s3, 11")
    a(f"v_lshl_add_u32 {v(t0)}, v0, 2, s29")
    a(f"v_mov_b32 {v(tm)}, {v(l)}"); a(f"v_permlane32_swap_b32 {v(l)}, {v(tm)}"); a(f"v_add_f32 {v(S+1)}, {v(l)}, {v(tm)}")
    a("s_lshl_b32 s29, s3, 3")
    a(f"v_lshl_add_u32 {v(al)}, v0, 4, s29")
    a(f"v_mul_f32 {v(S)}, s27, {v(m)}")
    a("s_mov_b64 exec, 0x1111")
    a(f"ds_write_b64 {v(al)}, {v(S,2)} offset:{LDS_ML}")
    a("s_mov_b64 exec, -1")
    for k in range(4): a(f"ds_write2st64_b32 {v(t0)}, {v(O+8*k)}, {v(O+8*k+4)} offset0:{LDS_OM//256+2*k} offset1:{LDS_OM//256+2*k+1}")
    a(f"v_lshrrev_b32 {v(tm)}, 4, v0"); a(f"v_lshlrev_b32 {v(tm)}, 6, {v(tm)}")
    a("s_lshl_b32 s30, s3, 8")
    a(f"v_lshl_add_u32 {v(al)}, v0, 2, s30")
    a("s_lshl_b32 s30, s20, 16"); a("s_lshl_b32 s34, s21, 10"); a("s_add_u32 s30, s30, s34"); a("s_lshl_b32 s34, s3, 7"); a("s_add_u32 s30, s30, s34")
    a(f"s_add_u32 s30, s30, {WS_OP}")
    a(f"v_lshrrev_b32 {v(t1)}, 5, v0"); a(f"v_lshlrev_b32 {v(t1)}, 15, {v(t1)}"); a(f"v_and_b32 {v(t2)}, 31, v0")
    a(f"v_lshl_add_u32 {v(t1)}, {v(t2)}, 2, {v(t1)}"); a(f"v_add_u32 {v(t1)}, s30, {v(t1)}")
    a("s_lshl_b32 s30, s20, 10"); a("s_lshl_b32 s34, s21, 3"); a("s_add_u32 s30, s30, s34")
    a(f"s_add_u32 s30, s30, {WS_ML}"); a(f"v_lshl_add_u32 {v(P)}, v0, 4, s30")
    a("s_mov_b32 s6, 0x00010001"); a("s_mov_b32 s7, 0x00010001")
    a("s_waitcnt lgkmcnt(0)")
    a("s_barrier")
    for i in range(4): a(f"ds_read_b128 {v(T+4*i,4)}, {v(tm)} offset:{LDS_ML+16*i}")
    for w in range(0, 8, 2):
        a(f"ds_read2st64_b32 {v(T+16+w,2)}, {v(al)} offset0:{LDS_OM//256 + 8*w} offset1:{LDS_OM//256 + 8*(w+1)}")
    ML = VA; OO = KB; ACC = VA + 8; CW = VA + 16; vx = VA + 4; U = VA + 24
    aML = KA; aO = KA + 1
    a("s_and_b32 s33, s21, 1")
    a("s_lshl_b32 s29, s20, 10"); a("s_lshl_b32 s30, s33, 9"); a("s_add_u32 s29, s29, s30"); a(f"s_add_u32 s29, s29, {WS_ML}")
    a(f"v_lshl_add_u32 {v(aML)}, {v(t2)}, 4, s29")
    a("s_lshl_b32 s29, s20, 16"); a("s_lshl_b32 s30, s33, 15"); a("s_add_u32 s29, s29, s30"); a("s_lshl_b32 s30, s3, 12"); a("s_add_u32 s29, s29, s30")
    a(f"s_add_u32 s29, s29, {WS_OP}")
    a(f"v_lshl_add_u32 {v(aO)}, v0, 4, s29")
    a("s_waitcnt lgkmcnt(4)")
    Mx = S
    a(f"v_max3_f32 {v(Mx)}, {v(T)}, {v(T+2)}, {v(T+4)}"); a(f"v_max3_f32 {v(t0)}, {v(T+6)}, {v(T+8)}, {v(T+10)}")
    a(f"v_max3_f32 {v(Mx)}, {v(Mx)}, {v(T+12)}, {v(T+14)}"); a(f"v_max_f32 {v(Mx)}, {v(Mx)}, {v(t0)}")
    for w in range(8): a(f"v_sub_f32 {v(T+2*w)}, {v(T+2*w)}, {v(Mx)}")
    for w in range(8): a(f"v_exp_f32 {v(T+2*w)}, {v(T+2*w)}")
    a("s_waitcnt lgkmcnt(0)")
    a(f"v_mul_f32 {v(S+2)}, {v(T)}, {v(T+16)}"); a(f"v_mul_f32 {v(S+3)}, {v(T+2)}, {v(T+17)}")
    for w in range(2, 8): a(f"v_fmac_f32 {v(S+2+(w&1))}, {v(T+2*w)}, {v(T+16+w)}")
    a(f"v_add_f32 {v(S+2)}, {v(S+2)}, {v(S+3)}")
    a(f"v_min_u32 {v(S+2)}, -2, {v(S+2)}")
    def dual_store(txt, lab):
        if local:
            a("s_cmp_eq_u32 s62, 1"); a(f"s_cbranch_scc1 {name}_{lab}a")
            a(txt + " sc1"); a(f"s_branch {name}_{lab}b")
            a.label(f"{name}_{lab}a"); a(txt); a.label(f"{name}_{lab}b")
        else: a(txt + " sc1")
    dual_store(f"global_store_dword {v(t1)}, {v(S+2)}, s[46:47]", "so")
    a("s_cmp_lg_u32 s3, 0"); a(f"s_cbranch_scc1 {name}_noml")
    a(f"v_mul_f32 {v(S+1)}, {v(T)}, {v(T+1)}"); a(f"v_mul_f32 {v(S+3)}, {v(T+2)}, {v(T+3)}")
    for w in range(2, 8): a(f"v_fmac_f32 {v(S+1+2*(w&1))}, {v(T+2*w)}, {v(T+2*w+1)}")
    a(f"v_add_f32 {v(S+1)}, {v(S+1)}, {v(S+3)}")
    a(f"v_min_u32 {v(S)}, -2, {v(Mx)}"); a(f"v_min_u32 {v(S+1)}, -2, {v(S+1)}")
    a("s_mov_b64 exec, s[6:7]")
    dual_store(f"global_store_dwordx2 {v(P)}, {v(S,2)}, s[46:47]", "sm")
    a("s_mov_b64 exec, -1")
    a.label(f"{name}_noml")
    stamp()
    a("s_mov_b32 s30, 0"); a("s_mov_b32 s31, 0")
    WU = VB
    a(f"s_lshl_b32 s29, s3, 8"); a(f"v_lshl_add_u32 {v(t1)}, {v(t2)}, 3, s29")
    a(f"v_bfe_u32 {v(t3)}, v0, 2, 1"); a("s_lshl_b32 s34, s3, 4"); a("s_add_u32 s29, s29, s34"); a(f"v_lshl_add_u32 {v(t3)}, {v(t3)}, 7, s29")
    a.label(f"{name}_p2")
    a(f"global_load_dwordx4 {v(ML,4)}, {v(aML)}, s[46:47] sc1")
    a("s_cmp_eq_u32 s31, 1"); a(f"s_cbranch_scc1 {name}_p2m")
    for i in range(4):
        a(f"global_load_dwordx4 {v(OO+4*i,4)}, {v(aO)}, s[46:47] offset:{1024*i} sc1")
    a("s_waitcnt vmcnt(0)")
    a(f"v_max3_u32 {v(vx)}, {v(OO)}, {v(OO+1)}, {v(OO+2)}"); a(f"v_max3_u32 {v(vx+1)}, {v(OO+3)}, {v(OO+4)}, {v(OO+5)}")
    for i in range(6, 14, 4):
        a(f"v_max3_u32 {v(vx)}, {v(vx)}, {v(OO+i)}, {v(OO+i+1)}"); a(f"v_max3_u32 {v(vx+1)}, {v(vx+1)}, {v(OO+i+2)}, {v(OO+i+3)}")
    a(f"v_max3_u32 {v(vx)}, {v(vx)}, {v(OO+14)}, {v(OO+15)}"); a(f"v_max_u32 {v(vx)}, {v(vx)}, {v(vx+1)}")
    a(f"v_cmp_eq_u32 vcc, -1, {v(vx)}")
    a("s_cmp_eq_u64 vcc, 0"); a("s_cselect_b32 s31, 1, 0")
    a.label(f"{name}_p2m")
    a("s_add_u32 s30, s30, 1")
    a("s_waitcnt vmcnt(0)")
    a(f"v_max3_u32 {v(vx)}, {v(ML)}, {v(ML+1)}, {v(ML+2)}"); a(f"v_max_u32 {v(vx)}, {v(vx)}, {v(ML+3)}")
    a(f"v_cmp_eq_u32 vcc, -1, {v(vx)}")
    a(f"s_cmp_gt_u32 s30, {SPIN_MAX}"); a(f"s_cbranch_scc1 {name}_p2d")
    a(f"s_cbranch_vccnz {name}_p2s")
    a("s_cmp_eq_u32 s31, 1"); a(f"s_cbranch_scc1 {name}_p2d")
    a.label(f"{name}_p2s")
    if ps2: a(f"s_sleep {ps2}")
    a(f"s_branch {name}_p2")
    a.label(f"{name}_p2d")
    stamp()
    a(f"v_max_f32 {v(t0)}, {v(ML)}, {v(ML+2)}")
    allreduce(a, "v_max_f32", t0, tm, lanes=16)
    a(f"v_sub_f32 {v(vx)}, {v(ML)}, {v(t0)}"); a(f"v_sub_f32 {v(vx+1)}, {v(ML+2)}, {v(t0)}")
    a(f"v_exp_f32 {v(vx)}, {v(vx)}"); a(f"v_exp_f32 {v(vx+1)}, {v(vx+1)}")
    a(f"ds_write_b64 {v(t1)}, {v(vx,2)} offset:{LDS_C}")
    a(f"v_mul_f32 {v(t0)}, {v(vx)}, {v(ML+1)}"); a(f"v_fmac_f32 {v(t0)}, {v(vx+1)}, {v(ML+3)}")
    a("s_waitcnt lgkmcnt(0)")
    a(f"ds_read_b128 {v(CW,4)}, {v(t3)} offset:{LDS_C}")
    allreduce(a, "v_add_f32", t0, tm, lanes=16)
    a(f"v_rcp_f32 {v(t0)}, {v(t0)}")
    a("s_lshl_b32 s34, s3, 10"); a(f"v_lshl_add_u32 {v(t1)}, v0, 4, s34")
    a(f"v_lshrrev_b32 {v(t3)}, 2, v0"); a("s_lshl_b32 s34, s3, 7"); a(f"v_lshl_add_u32 {v(t3)}, {v(t3)}, 2, s34")
    a(f"v_readlane_b32 s4, {v(t0)}, 0"); a(f"v_readlane_b32 s5, {v(t0)}, 16")
    a("s_waitcnt lgkmcnt(0)")
    for k in range(4):
        for c in range(4):
            op = "v_mul_f32" if k == 0 else "v_fmac_f32"
            a(f"{op} {v(ACC+c)}, {v(CW+k)}, {v(OO+4*k+c)}")
    a(f"ds_write_b128 {v(t1)}, {v(ACC,4)} offset:{LDS_R1}")
    for c in range(8): unpack(a, WU+2*c, WU+2*c+1, WO+c)
    a(f"v_add_u32 {v(t0)}, 64, {v(t3)}")
    a(f"v_and_b32 {v(t1)}, 3, v0"); a(f"v_lshrrev_b32 {v(tm)}, 4, v0"); a(f"v_lshlrev_b32 {v(t1)}, 5, {v(t1)}"); a(f"v_lshl_add_u32 {v(t1)}, {v(tm)}, 3, {v(t1)}")
    a(f"v_add_u32 {v(t1)}, s34, {v(t1)}")
    a("s_waitcnt lgkmcnt(0)"); a("s_barrier")
    b0 = LDS_R1 // 256
    for k in range(4): a(f"ds_read2st64_b32 {v(U+2*k,2)}, {v(t3)} offset0:{b0+8*k} offset1:{b0+8*k+4}")
    for k in range(4): a(f"ds_read2st64_b32 {v(U+8+2*k,2)}, {v(t0)} offset0:{b0+8*k} offset1:{b0+8*k+4}")
    a(f"v_lshlrev_b32 {v(t2)}, 2, v0")
    a("s_lshl_b32 s29, s20, 12"); a("s_lshl_b32 s30, s33, 11"); a("s_add_u32 s29, s29, s30"); a("s_lshr_b32 s30, s21, 1"); a("s_lshl_b32 s30, s30, 7")
    a("s_add_u32 s29, s29, s30"); a(f"s_add_u32 s29, s29, {WS_YP}")
    if rep8:
        a(f"v_lshrrev_b32 {v(t3)}, 3, v0"); a(f"v_lshlrev_b32 {v(t3)}, 15, {v(t3)}"); a(f"v_and_b32 {v(t2)}, 7, v0"); a(f"v_lshlrev_b32 {v(t2)}, 4, {v(t2)}")
        a(f"v_add3_u32 {v(t3)}, {v(t3)}, {v(t2)}, s29")
    else: a(f"v_add_u32 {v(t3)}, s29, {v(t2)}")
    a("s_mov_b32 s6, 0x000f000f"); a("s_mov_b32 s7, 0x000f000f")
    a("s_waitcnt lgkmcnt(4)")
    for k in range(4): a(f"v_add_f32 {v(U+2*k)}, {v(U+2*k)}, {v(U+2*k+1)}")
    a(f"v_add_f32 {v(U)}, {v(U)}, {v(U+2)}"); a(f"v_add_f32 {v(U+4)}, {v(U+4)}, {v(U+6)}")
    a("s_waitcnt lgkmcnt(0)")
    for k in range(4): a(f"v_add_f32 {v(U+8+2*k)}, {v(U+8+2*k)}, {v(U+8+2*k+1)}")
    a(f"v_add_f32 {v(U+8)}, {v(U+8)}, {v(U+10)}"); a(f"v_add_f32 {v(U+12)}, {v(U+12)}, {v(U+14)}")
    a(f"v_add_f32 {v(U)}, {v(U)}, {v(U+4)}"); a(f"v_add_f32 {v(U+1)}, {v(U+8)}, {v(U+12)}")
    a(f"v_mul_f32 {v(U)}, s4, {v(U)}"); a(f"v_mul_f32 {v(U+1)}, s5, {v(U+1)}")
    rne2(a, U, U+1, U, U+1, t0)
    for c in range(8): a(f"v_mul_f32 {v(WU+c)}, {v(U)}, {v(WU+c)}")
    for c in range(8): a(f"v_fmac_f32 {v(WU+c)}, {v(U+1)}, {v(WU+8+c)}")
    fold8(WU)
    a("s_mov_b64 exec, s[6:7]")
    a(f"ds_write_b64 {v(t1)}, {v(WU,2)} offset:{LDS_R2}")
    a("s_mov_b64 exec, -1")
    a("s_waitcnt lgkmcnt(0)"); a("s_barrier")
    a("s_cmp_lg_u32 s3, 0"); a(f"s_cbranch_scc1 {name}_s3")
    if rep8:
        for w_ in range(8): a(f"ds_read_b128 {v(KB+4*w_,4)}, {v(t2)} offset:{LDS_R2+128*w_}")
        for w_ in range(4):
            a(f"s_waitcnt lgkmcnt({6-2*w_})")
            for c in range(0, 4, 2): a(f"v_pk_add_f32 {v(KB+8*w_+c,2)}, {v(KB+8*w_+c,2)}, {v(KB+8*w_+4+c,2)}")
        for c in range(0, 4, 2): a(f"v_pk_add_f32 {v(KB+c,2)}, {v(KB+c,2)}, {v(KB+8+c,2)}")
        for c in range(0, 4, 2): a(f"v_pk_add_f32 {v(KB+16+c,2)}, {v(KB+16+c,2)}, {v(KB+24+c,2)}")
        for c in range(0, 4, 2): a(f"v_pk_add_f32 {v(KB+c,2)}, {v(KB+c,2)}, {v(KB+16+c,2)}")
        for c in range(4): a(f"v_min_u32 {v(KB+c)}, -2, {v(KB+c)}")
        a(f"global_store_dwordx4 {v(t3)}, {v(KB,4)}, s[46:47] sc1")
    else:
        a(f"ds_read2st64_b32 {v(U,2)}, {v(t2)} offset0:{LDS_R2//256} offset1:{LDS_R2//256+1}")
        a(f"ds_read2st64_b32 {v(U+2,2)}, {v(t2)} offset0:{LDS_R2//256+2} offset1:{LDS_R2//256+3}")
        a("s_waitcnt lgkmcnt(0)")
        a(f"v_add_f32 {v(U)}, {v(U)}, {v(U+1)}"); a(f"v_add_f32 {v(U+2)}, {v(U+2)}, {v(U+3)}"); a(f"v_add_f32 {v(U)}, {v(U)}, {v(U+2)}")
        a(f"v_mov_b32 {v(tm)}, {v(U)}"); a(f"v_permlane32_swap_b32 {v(U)}, {v(tm)}"); a(f"v_add_f32 {v(U)}, {v(U)}, {v(tm)}")
        a(f"v_min_u32 {v(U)}, -2, {v(U)}")
        a("s_mov_b32 exec_hi, 0")
        a(f"global_store_dword {v(t3)}, {v(U)}, s[46:47] {yst}")
        a("s_mov_b64 exec, -1")
    a.fence()
    a.label(f"{name}_s3")
    stamp()
    Y = KA; AY = KB
    if rep8:
        a("s_and_b32 s29, s63, 7"); a("s_lshl_b32 s29, s29, 15"); a(f"v_add_u32 {v(t0)}, s29, {v(al)}")
    for i in range(8): a(f"v_add_u32 {v(AY+i)}, {WS_YP + 0x1000*i}, {v(t0 if rep8 else al)}")
    W1u = [VA, VA+2]; B1u = [VA+4, VA+6]; CC0 = VA+8; ONE = VA+10
    for k in range(2):
        unpack(a, W1u[k], W1u[k]+1, W1+k); unpack(a, B1u[k], B1u[k]+1, B1+k)
    c0 = -2.0 * LOG2E * 0.7978845608028654; c1 = c0 * 0.044715
    a(f"v_mov_b32 {v(CC0)}, {f32hex(c0)}"); a(f"v_mov_b32 {v(CC0+1)}, {f32hex(c0)}"); a(f"v_mov_b32 {v(ONE)}, 1.0"); a(f"v_mov_b32 {v(ONE+1)}, 1.0")
    a(f"s_mov_b32 s4, {f32hex(c1)}"); a(f"s_mov_b32 s5, {f32hex(c1)}")
    a("s_cmp_lt_u32 s3, 6"); a(f"s_cbranch_scc1 {name}_w2ok")
    a(f"v_mov_b32 {v(W2+1)}, 0")
    a.label(f"{name}_w2ok")
    a(f"v_lshlrev_b32 {v(XR)}, 16, {v(XR)}")
    a("s_mov_b32 s30, 0"); a("s_mov_b32 s31, 0")
    vx = KA + 16
    if p3x:
        MK = 80
        for i in range(8): a(f"s_mov_b64 s[{MK+2*i}:{MK+2*i+1}], -1")
        a.label(f"{name}_p3")
        for i in range(8):
            a(f"s_mov_b64 exec, s[{MK+2*i}:{MK+2*i+1}]")
            a(f"global_load_dword {v(Y+2*i)}, {v(AY+i)}, s[46:47] {yld}")
            a(f"global_load_dword {v(Y+2*i+1)}, {v(AY+i)}, s[46:47] offset:2048 {yld}")
        a("s_mov_b64 exec, -1")
        a("s_add_u32 s30, s30, 1")
        for i in range(8):
            a(f"s_waitcnt vmcnt({14-2*i})")
            a(f"v_max_u32 {v(vx+i)}, {v(Y+2*i)}, {v(Y+2*i+1)}")
            a(f"v_cmp_eq_u32 s[{MK+2*i}:{MK+2*i+1}], -1, {v(vx+i)}")
            if i == 1: a(f"s_or_b64 s[34:35], s[{MK}:{MK+1}], s[{MK+2}:{MK+3}]")
            if i > 1: a(f"s_or_b64 s[34:35], s[34:35], s[{MK+2*i}:{MK+2*i+1}]")
        a(f"s_cbranch_scc0 {name}_p3d")
        a(f"s_cmp_gt_u32 s30, {SPIN_MAX}"); a(f"s_cbranch_scc0 {name}_p3")
    else:
        a.label(f"{name}_p3")
        for i in range(8):
            a(f"s_bitcmp1_b32 s31, {i}"); a(f"s_cbranch_scc1 {name}_p3k{i}")
            a(f"global_load_dword {v(Y+2*i)}, {v(AY+i)}, s[46:47] sc1")
            a(f"global_load_dword {v(Y+2*i+1)}, {v(AY+i)}, s[46:47] offset:2048 sc1")
            a.label(f"{name}_p3k{i}")
        a("s_add_u32 s30, s30, 1")
        a("s_waitcnt vmcnt(0)")
        for i in range(8): a(f"v_max_u32 {v(vx+i)}, {v(Y+2*i)}, {v(Y+2*i+1)}")
        a(f"v_max3_u32 {v(vx+8)}, {v(vx)}, {v(vx+1)}, {v(vx+2)}"); a(f"v_max3_u32 {v(vx+9)}, {v(vx+3)}, {v(vx+4)}, {v(vx+5)}")
        a(f"v_max3_u32 {v(vx+8)}, {v(vx+8)}, {v(vx+6)}, {v(vx+7)}"); a(f"v_max_u32 {v(vx+8)}, {v(vx+8)}, {v(vx+9)}")
        a(f"v_cmp_eq_u32 vcc, -1, {v(vx+8)}")
        a(f"s_cbranch_vccz {name}_p3d")
        a(f"s_cmp_gt_u32 s30, {SPIN_MAX}"); a(f"s_cbranch_scc1 {name}_p3d")
        for i in range(8):
            a(f"v_cmp_eq_u32 vcc, -1, {v(vx+i)}")
            a("s_cmp_eq_u64 vcc, 0"); a(f"s_cselect_b32 s34, {1<<i}, 0"); a("s_or_b32 s31, s31, s34")
        if ps3: a(f"s_sleep {ps3}")
        a(f"s_branch {name}_p3")
    a.label(f"{name}_p3d")
    stamp()
    for k in range(8): a(f"v_add_f32 {v(Y+2*k)}, {v(Y+2*k)}, {v(Y+2*k+1)}")
    for k in range(4): a(f"v_add_f32 {v(Y+4*k)}, {v(Y+4*k)}, {v(Y+4*k+2)}")
    a(f"v_add_f32 {v(Y)}, {v(Y)}, {v(Y+4)}"); a(f"v_add_f32 {v(Y+8)}, {v(Y+8)}, {v(Y+12)}"); a(f"v_add_f32 {v(Y)}, {v(Y)}, {v(Y+8)}")
    rne1(a, Y, Y, t1)
    a(f"v_add_f32 {v(Y)}, {v(Y)}, {v(XR)}")
    rne1(a, Y, Y, t1)
    a(f"ds_write_b32 {v(al)}, {v(Y)} offset:{LDS_H}")
    a(f"v_lshlrev_b32 {v(t2)}, 4, v0")
    a("s_lshl_b32 s29, s2, 3"); a(f"v_mov_b32 {v(t1)}, s29")
    Y = VB
    X = [Y+8+i for i in range(8)]; mb, sq, rc = Y+16, Y+17, Y+18; PK = Y+20; HP = Y+24; HH = Y+26
    a("s_waitcnt lgkmcnt(0)"); a("s_barrier")
    a("s_cmp_lg_u32 s3, 0"); a(f"s_cbranch_scc1 {name}_lnw")
    a(f"ds_read_b128 {v(X[0],4)}, {v(t2)} offset:{LDS_H}"); a(f"ds_read_b128 {v(X[4],4)}, {v(t2)} offset:{LDS_H+1024}")
    a(f"ds_read_b64 {v(HH,2)}, {v(t1)} offset:{LDS_H}")
    a("s_waitcnt lgkmcnt(0)")
    if fine: stamp()
    def stats():
        if fastln: ln_stats_fast(a, X, mb, sq, rc, t0, t1, t2, t3, KB, 32)
        else: ln_stats(a, X, mb, sq, rc, t0, t1, t2)
    stats()
    TA = [KA + 4*i for i in range(5)]
    assert mb % 2 == 0 and rc % 2 == 0
    srcs = [X[2*i] for i in range(4)] + [HH]
    for xs, tb in zip(srcs, TA): a(f"v_pk_add_f32 {v(tb,2)}, {v(xs,2)}, {v(mb,2)} op_sel_hi:[1,0] neg_lo:[0,1] neg_hi:[0,1]")
    for tb in TA: a(f"v_cvt_pk_bf16_f32 {v(tb+2)}, {v(tb)}, {v(tb+1)}")
    for tb in TA: unpack(a, tb, tb+1, tb+2)
    for tb in TA: a(f"v_pk_mul_f32 {v(tb+2,2)}, {v(tb,2)}, {v(rc,2)} op_sel_hi:[1,0]")
    tb = TA[4]
    a(f"v_fma_f32 {v(tb)}, -{v(tb+2)}, {v(sq)}, {v(tb)}"); a(f"v_fma_f32 {v(tb+1)}, -{v(tb+3)}, {v(sq)}, {v(tb+1)}")
    for t_ in TA[:4]: a(f"v_cvt_pk_bf16_f32 {v(t_)}, {v(t_+2)}, {v(t_+3)}")
    a(f"v_fmac_f32 {v(tb+2)}, {v(tb)}, {v(rc)}"); a(f"v_fmac_f32 {v(tb+3)}, {v(tb+1)}, {v(rc)}")
    for i in range(4): unpack(a, X[2*i], X[2*i+1], TA[i])
    a(f"v_cvt_pk_bf16_f32 {v(tb)}, {v(tb+2)}, {v(tb+3)}")
    unpack(a, HP, HP+1, tb)
    stats()
    ln_pair(a, HP, HP+1, mb, sq, rc, PK, t0, t1, t2, t3)
    a(f"v_mov_b32 {v(t0)}, 0")
    a(f"ds_write_b32 {v(t0)}, {v(PK)} offset:{LDS_FL}")
    a("s_waitcnt lgkmcnt(0)")
    a.label(f"{name}_lnw")
    if fine: nst[0] -= 1; stamp()
    a(f"v_mov_b32 {v(t0)}, 0")
    a("s_barrier")
    a(f"ds_read_b32 {v(PK)}, {v(t0)} offset:{LDS_FL}")
    a("s_waitcnt lgkmcnt(0)")
    unpack(a, HP, HP+1, PK)
    if fine: stamp()
    u = [VA+12+i for i in range(8)]; w = [VA+20+i for i in range(8)]; z = [VA+28, VA+29]; tc = [KA+i for i in range(4)]
    units = [(k, ch) for k in range(2) for ch in range(2)]
    def each(fn):
        for i, (k, ch) in enumerate(units): fn(u[2*i], w[2*i], tc[i], k, ch)
    def rn(U, W_, t, k, ch):
        a(f"v_cvt_pk_bf16_f32 {v(t)}, {v(U)}, {v(U+1)}")
    each(lambda U, W_, t, k, ch: a(f"v_pk_mul_f32 {v(U,2)}, {v(W1u[k],2)}, {v(HP,2)} op_sel:[0,{ch}] op_sel_hi:[1,{ch}]"))
    each(rn); each(lambda U, W_, t, k, ch: unpack(a, U, U+1, t))
    each(lambda U, W_, t, k, ch: a(f"v_pk_add_f32 {v(U,2)}, {v(U,2)}, {v(B1u[k],2)}"))
    each(rn); each(lambda U, W_, t, k, ch: unpack(a, U, U+1, t))
    each(lambda U, W_, t, k, ch: a(f"v_pk_mul_f32 {v(W_,2)}, {v(U,2)}, {v(U,2)}"))
    each(lambda U, W_, t, k, ch: a(f"v_pk_fma_f32 {v(W_,2)}, {v(W_,2)}, s[4:5], {v(CC0,2)}"))
    each(lambda U, W_, t, k, ch: a(f"v_pk_mul_f32 {v(W_,2)}, {v(W_,2)}, {v(U,2)}"))
    for i in range(8): a(f"v_exp_f32 {v(w[i])}, {v(w[i])}")
    each(lambda U, W_, t, k, ch: a(f"v_pk_add_f32 {v(W_,2)}, {v(W_,2)}, {v(ONE,2)}"))
    for i in range(8): a(f"v_rcp_f32 {v(w[i])}, {v(w[i])}")
    each(lambda U, W_, t, k, ch: a(f"v_pk_mul_f32 {v(U,2)}, {v(U,2)}, {v(W_,2)}"))
    each(rn)
    each(lambda U, W_, t, k, ch: a(f"v_dot2_f32_bf16 {v(z[ch])}, {v(t)}, {v(W2+k)}, {'0' if k == 0 else v(z[ch])}"))
    a(f"v_permlane32_swap_b32 {v(z[0])}, {v(z[1])}"); a(f"v_add_f32 {v(z[0])}, {v(z[0])}, {v(z[1])}")
    allreduce(a, "v_add_f32", z[0], t0, lanes=32)
    if fine: stamp()
    a("s_lshl_b32 s29, s3, 2"); a(f"v_add_u32 {v(t0)}, s29, v0")
    a("s_mov_b32 s6, 1"); a("s_mov_b32 s7, 1")
    a(f"v_and_b32 {v(t1)}, 32, v0")
    a("s_mov_b64 exec, s[6:7]")
    a(f"ds_write_b32 {v(t0)}, {v(z[0])} offset:{LDS_FR}")
    a("s_mov_b64 exec, -1")
    a(f"v_cmp_ne_u32 vcc, 0, {v(t1)}")
    a(f"v_cndmask_b32 {v(HH)}, {v(HH)}, {v(HH+1)}, vcc")
    a(f"v_lshrrev_b32 {v(t2)}, 4, {v(t1)}"); a("s_lshl_b32 s29, s2, 2"); a(f"v_add_u32 {v(t2)}, s29, {v(t2)}")
    a("s_waitcnt lgkmcnt(0)"); a("s_barrier")
    a("s_cmp_lg_u32 s3, 0"); a(f"s_cbranch_scc1 {name}_fin")
    a(f"ds_read_b128 {v(u[0],4)}, {v(t1)} offset:{LDS_FR}"); a(f"ds_read_b128 {v(u[4],4)}, {v(t1)} offset:{LDS_FR+16}")
    a(f"v_mov_b32 {v(t0)}, 0"); a(f"v_mov_b32 {v(t1)}, s61")
    a("s_waitcnt lgkmcnt(0)")
    for i in range(4): a(f"v_add_f32 {v(u[i])}, {v(u[i])}, {v(u[4+i])}")
    a(f"v_add_f32 {v(u[0])}, {v(u[0])}, {v(u[1])}"); a(f"v_add_f32 {v(u[2])}, {v(u[2])}, {v(u[3])}"); a(f"v_add_f32 {v(z[0])}, {v(u[0])}, {v(u[2])}")
    rne1(a, z[0], z[0], t3)
    a(f"v_add_f32 {v(z[0])}, s60, {v(z[0])}")
    rne1(a, z[0], z[0], t3)
    a(f"v_add_f32 {v(z[0])}, {v(z[0])}, {v(HH)}")
    a(f"v_cvt_pk_bf16_f32 {v(z[0])}, {v(z[0])}, {v(z[0])}")
    a("s_mov_b64 exec, s[6:7]")
    a(f"global_store_short {v(t2)}, {v(z[0])}, s[50:51]")
    a("s_cmp_lg_u32 s2, 0"); a(f"s_cbranch_scc1 {name}_fin")
    a("s_mov_b64 exec, 1")
    a(f"global_store_dword {v(t0)}, {v(t1)}, s[46:47] offset:{WS_EP}")
    a.label(f"{name}_fin")
    if fine: stamp()
    if stamps:
        a("s_mov_b64 exec, 1")
        a("s_waitcnt vmcnt(0)")
        stamp()
        a.label(f"{name}_fin2")
        a("s_mov_b64 exec, 1")
        a("s_waitcnt lgkmcnt(0)")
        assert nst[0] <= 16
        a("s_lshl_b32 s29, s2, 3"); a("s_add_u32 s29, s29, s3"); a("s_lshl_b32 s29, s29, 7"); a(f"s_add_u32 s29, s29, {WS_STAMP}")
        a(f"v_mov_b32 {v(tm)}, s29")
        n = (nst[0] + 1) // 2
        if dbgst:
            a("s_load_dwordx2 s[44:45], s[0:1], 88")
            a("s_not_b32 s29, s64")
            a(f"v_mov_b32 {v(T)}, s29")
            for i in range(nst[0]): a(f"v_writelane_b32 {v(T)}, s{64+2*i}, {i+1}")
            a(f"s_mov_b64 exec, {hex((1 << (nst[0]+1)) - 1)}")
            a(f"v_lshlrev_b32 {v(T+1)}, 2, v0")
            a("s_waitcnt lgkmcnt(0)")
            a(f"global_atomic_umax {v(T+1)}, {v(T)}, s[44:45]")
            a("s_endpgm")
        for i in range(4*n): a(f"v_mov_b32 {v(T+i)}, s{64+i}")
        for i in range(n): a(f"global_store_dwordx4 {v(tm)}, {v(T+4*i,4)}, s[46:47] offset:{16*i}")
    a.label(f"{name}_end"); a("s_endpgm")
    a.label(f"{name}_w0")
    nst_end = nst[0]; nst[0] = nst_save
    if bare:
        a("s_mov_b32 s22, 0"); kv_setup(); loadK(KA); loadV(VA); a("s_barrier"); late_setup(); a("s_waitcnt vmcnt(0)"); stamp(); stamp(); nst[0] -= 2
        a("s_barrier"); init_state(); a(f"s_branch {name}_join")
    if prio: a("s_setprio 3")
    W = KB; X = [M+i for i in range(8)]; xr = M + 8; vo = M + 12; mb, sq, rc = M+13, M+14, M+15
    t0, t1, t2, t3 = T, T+1, T+2, T+3
    CL = O
    a(f"v_lshrrev_b32 {v(t0)}, 2, v0"); a(f"v_and_b32 {v(t1)}, 3, v0"); a(f"v_lshlrev_b32 {v(t2)}, 6, {v(t0)}"); a(f"v_lshl_add_u32 {v(t2)}, {v(t1)}, 3, {v(t2)}")
    a(f"v_lshlrev_b32 {v(vo)}, 13, {v(t0)}"); a(f"v_lshl_add_u32 {v(vo)}, {v(t1)}, 4, {v(vo)}")
    a("s_and_b32 s31, s21, 1"); a("s_lshr_b32 s34, s21, 1")
    a("s_lshl_b32 s32, s20, 10"); a(f"s_xor_b32 s33, s34, {qx}"); a("s_lshl_b32 s33, s33, 6"); a("s_add_u32 s32, s32, s33"); a("s_lshl_b32 s33, s31, 21"); a("s_add_u32 s32, s32, s33")
    a("s_mov_b32 s18, 0x400000"); a("s_mov_b32 s19, 0x20000")
    a("s_waitcnt lgkmcnt(0)")
    a(f"global_load_dwordx2 {v(xr,2)}, {v(t2)}, s[36:37]"); a(f"global_load_dwordx2 {v(xr+2,2)}, {v(t2)}, s[36:37] offset:32")
    a("s_mov_b32 s16, s42"); a("s_mov_b32 s17, s43")
    for i in range(16):
        if noq == 2: a(f"buffer_load_dwordx4 {v(W+4*i,4)}, {v(vo)}, s[16:19], s19 offen offset:4000") if False else a(f"global_load_dword {v(W+4*i)}, {v(t2)}, s[36:37]")
        else: a(f"buffer_load_dwordx4 {v(W+4*i,4)}, {v(vo)}, s[16:19], s32 offen {qpol}")
        if i < 15: a("s_add_u32 s32, s32, 0x20000")
    for i in range(4): a(f"v_mov_b32 {v(CL+i)}, -1")
    a("s_lshl_b32 s29, s20, 16"); a("s_lshl_b32 s30, s21, 10"); a("s_add_u32 s29, s29, s30"); a(f"s_add_u32 s29, s29, {WS_OP}")
    a(f"v_lshl_add_u32 {v(CL+4)}, v0, 4, s29"); a(f"v_add_u32 {v(CL+5)}, 0x8000, {v(CL+4)}")
    a("s_lshl_b32 s29, s20, 10"); a("s_lshl_b32 s30, s21, 3"); a("s_add_u32 s29, s29, s30"); a(f"s_add_u32 s29, s29, {WS_ML}")
    a(f"v_lshl_add_u32 {v(CL+6)}, v0, 8, s29")
    a("s_lshl_b32 s29, s20, 12"); a("s_lshl_b32 s30, s31, 11"); a("s_add_u32 s29, s29, s30"); a("s_lshl_b32 s30, s34, 7"); a("s_add_u32 s29, s29, s30")
    a(f"s_add_u32 s29, s29, {WS_YP}")
    if rep8:
        a(f"v_lshrrev_b32 {v(CL+7)}, 3, v0"); a(f"v_lshlrev_b32 {v(CL+7)}, 15, {v(CL+7)}"); a(f"v_and_b32 {v(CL+8)}, 7, v0"); a(f"v_lshlrev_b32 {v(CL+8)}, 4, {v(CL+8)}")
        a(f"v_add3_u32 {v(CL+7)}, {v(CL+7)}, {v(CL+8)}, s29")
    else: a(f"v_lshl_add_u32 {v(CL+7)}, v0, 4, s29")
    a(f"global_load_dword {v(CL+20)}, {v(t2)}, s[36:37]" if noclr else f"global_store_dwordx4 {v(CL+4)}, {v(CL,4)}, s[46:47] sc1")
    a(f"global_load_dword {v(CL+20)}, {v(t2)}, s[36:37]" if noclr else f"global_store_dwordx4 {v(CL+5)}, {v(CL,4)}, s[46:47] sc1")
    a("s_mov_b64 exec, 0xf")
    a(f"global_load_dword {v(CL+20)}, {v(t2)}, s[36:37]" if noclr else f"global_store_dwordx2 {v(CL+6)}, {v(CL,2)}, s[46:47] sc1")
    a("s_mov_b64 exec, -1" if rep8 else "s_mov_b64 exec, 0xff")
    a(f"global_load_dword {v(CL+20)}, {v(t2)}, s[36:37]" if noclr else f"global_store_dwordx4 {v(CL+7)}, {v(CL,4)}, s[46:47] sc1")
    a("s_mov_b64 exec, -1")
    a("s_mov_b32 s22, 0")
    kv_setup()
    loadK(KA); loadV(VA)
    a("s_barrier")
    late_setup()
    a(f"v_lshrrev_b32 {v(t2)}, 3, {v(t0)}"); a(f"v_lshlrev_b32 {v(vo)}, 9, {v(t2)}"); a(f"v_lshl_add_u32 {v(vo)}, {v(t1)}, 7, {v(vo)}")
    a(f"v_and_b32 {v(t2)}, 7, {v(t0)}"); a(f"v_lshl_add_u32 {v(vo)}, {v(t2)}, 2, {v(vo)}")
    RA = CL + 8
    a("s_lshl_b32 s29, s31, 9"); a(f"v_lshl_add_u32 {v(RA)}, {v(t0)}, 5, s29")
    GS = CL + 9
    a(f"v_lshrrev_b32 {v(t2)}, 4, v0"); a(f"v_lshlrev_b32 {v(GS)}, 6, {v(t1)}"); a(f"v_lshl_add_u32 {v(GS)}, {v(t2)}, 4, {v(GS)}")
    a("s_lshl_b32 s29, s20, 13"); a(f"s_add_u32 s29, s29, {WS_QG}"); a("s_lshl_b32 s30, s31, 12"); a("s_add_u32 s30, s30, s29"); a("s_lshl_b32 s33, s34, 8"); a("s_add_u32 s30, s30, s33")
    a(f"v_add_u32 {v(GS)}, s30, {v(GS)}")
    GL = CL + 10
    a(f"v_lshl_add_u32 {v(GL)}, v0, 4, s29"); a(f"v_add_u32 {v(GL+1)}, 0x1000, {v(GL)}")
    a("s_lshl_b32 s30, s20, 8"); a(f"v_and_b32 {v(t2)}, 31, v0"); a(f"v_lshl_add_u32 {v(GL+2)}, {v(t2)}, 3, s30")
    a("s_lshl_b32 s33, s21, 3"); a("s_add_u32 s33, s33, s30"); a(f"v_mov_b32 {v(GL+3)}, s33")
    a("s_waitcnt vmcnt(36)")
    for i in range(4): unpack(a, X[2*i], X[2*i+1], xr + i)
    ln_stats(a, X, mb, sq, rc, t0, t1, t2)
    for e in range(4):
        ln_pair(a, X[e], X[e+4], mb, sq, rc, xr + e, t0, t1, t2, t3)
        a(f"ds_write_b32 {v(vo)}, {v(xr+e)} offset:{LDS_XN + 32*e}")
    a("s_waitcnt lgkmcnt(0)")
    a(f"ds_read_b128 {v(X[0],4)}, {v(RA)} offset:{LDS_XN}"); a(f"ds_read_b128 {v(X[4],4)}, {v(RA)} offset:{LDS_XN+16}")
    AC = CL + 16
    for c in range(8): a(f"v_mov_b32 {v(AC+c)}, 0")
    a("s_add_u32 s62, s61, 0x9e3779b9")
    GD = CL + 24
    a(f"v_mov_b32 {v(GD+1)}, s62"); a(f"v_mov_b32 {v(GD+3)}, s62"); a(f"v_mov_b32 {v(GD+4)}, s63"); a(f"v_mov_b32 {v(GD+5)}, s62")
    a("s_waitcnt lgkmcnt(0)")
    for p in range(8):
        a(f"s_waitcnt vmcnt({20 + 14 - 2*p})")
        for cc in range(4):
            a(f"v_perm_b32 {v(T+2*cc)}, {v(W+8*p+4+cc)}, {v(W+8*p+cc)}, s25")
            a(f"v_perm_b32 {v(T+2*cc+1)}, {v(W+8*p+4+cc)}, {v(W+8*p+cc)}, s26")
        for c in range(8): a(f"v_dot2_f32_bf16 {v(AC+c)}, {v(T+c)}, {v(X[p])}, {v(AC+c)}")
    a.nop(3)
    fold8(AC)
    a(f"v_mov_b32 {v(GD)}, {v(AC)}"); a(f"v_mov_b32 {v(GD+2)}, {v(AC+1)}")
    a("s_mov_b32 s4, 0x000f000f"); a("s_mov_b32 s5, 0x000f000f")
    a("s_waitcnt vmcnt(16)")
    a("s_mov_b64 exec, s[4:5]")
    a(f"global_store_dwordx4 {v(GS)}, {v(GD,4)}, s[46:47] sc1")
    a("s_mov_b64 exec, 1")
    a(f"global_store_dwordx2 {v(GL+3)}, {v(GD+4,2)}, s[46:47] offset:{WS_XG} sc1")
    a("s_mov_b64 exec, -1")
    stamp()
    a("s_mov_b32 s30, 0"); a("s_mov_b32 s31, 0")
    GA = KB
    if xgfirst:
        a.label(f"{name}_pollx")
        a(f"global_load_dwordx2 {v(GA+32,2)}, {v(GL+2)}, s[46:47] offset:{WS_XG} sc1")
        a("s_add_u32 s30, s30, 1")
        a("s_waitcnt vmcnt(0)")
        a(f"v_cmp_ne_u32 vcc, s62, {v(GA+33)}")
        a(f"s_cbranch_vccz {name}_poll")
        a(f"s_cmp_gt_u32 s30, {SPIN_MAX}"); a(f"s_cbranch_scc1 {name}_polled")
        if qsleep: a(f"s_sleep {qsleep}")
        a(f"s_branch {name}_pollx")
        a.label(f"{name}_poll")
        for i in range(8):
            a(f"global_load_dwordx4 {v(GA+4*i,4)}, {v(GL + (i >> 2))}, s[46:47] offset:{1024*(i&3)} sc1")
        a("s_add_u32 s30, s30, 1")
        a("s_waitcnt vmcnt(0)")
        for i in range(16): a(f"v_xor_b32 {v(GA+2*i+1)}, s62, {v(GA+2*i+1)}")
        for i in range(0, 16, 4):
            a(f"v_or3_b32 {v(GA+2*i+1)}, {v(GA+2*i+1)}, {v(GA+2*i+3)}, {v(GA+2*i+5)}"); a(f"v_or_b32 {v(GA+2*i+1)}, {v(GA+2*i+1)}, {v(GA+2*i+7)}")
        a(f"v_or3_b32 {v(GA+1)}, {v(GA+1)}, {v(GA+9)}, {v(GA+17)}"); a(f"v_or_b32 {v(GA+1)}, {v(GA+1)}, {v(GA+25)}")
        a(f"v_cmp_ne_u32 vcc, 0, {v(GA+1)}")
        a(f"s_cmp_gt_u32 s30, {SPIN_MAX}"); a(f"s_cbranch_scc1 {name}_polled")
        a(f"s_cbranch_vccnz {name}_poll")
    else:
        if noq: a(f"s_branch {name}_polled")
        a.label(f"{name}_poll")
        if qdelay: a(f"s_sleep {qdelay}")
        for i in range(8):
            a(f"s_bitcmp1_b32 s31, {i}"); a(f"s_cbranch_scc1 {name}_qk{i}")
            a(f"global_load_dwordx4 {v(GA+4*i,4)}, {v(GL + (i >> 2))}, s[46:47] offset:{1024*(i&3)} sc1")
            a.label(f"{name}_qk{i}")
        if not xglast: a(f"global_load_dwordx2 {v(GA+32,2)}, {v(GL+2)}, s[46:47] offset:{WS_XG} sc1")
        a("s_add_u32 s30, s30, 1")
        a("s_waitcnt vmcnt(0)")
        for i in range(8):
            a(f"v_cmp_ne_u32 vcc, s62, {v(GA+4*i+1)}"); a(f"v_cmp_ne_u32 s[4:5], s62, {v(GA+4*i+3)}")
            a("s_or_b64 vcc, vcc, s[4:5]"); a(f"s_cselect_b32 s34, 0, {1<<i}"); a("s_or_b32 s31, s31, s34")
        if xglast:
            a(f"s_cmp_gt_u32 s30, {SPIN_MAX}"); a(f"s_cbranch_scc1 {name}_polled")
            a("s_cmp_eq_u32 s31, 0xff"); a(f"s_cbranch_scc0 {name}_poll")
            a.label(f"{name}_pollx")
            a(f"global_load_dwordx2 {v(GA+32,2)}, {v(GL+2)}, s[46:47] offset:{WS_XG} sc1")
            a("s_add_u32 s30, s30, 1")
            a("s_waitcnt vmcnt(0)")
            a(f"v_cmp_ne_u32 vcc, s62, {v(GA+33)}")
            a(f"s_cmp_gt_u32 s30, {SPIN_MAX}"); a(f"s_cbranch_scc1 {name}_polled")
            a(f"s_cbranch_vccnz {name}_pollx")
        else:
            a(f"v_cmp_ne_u32 vcc, s62, {v(GA+33)}")
            a(f"s_cmp_gt_u32 s30, {SPIN_MAX}"); a(f"s_cbranch_scc1 {name}_polled")
            a(f"s_cbranch_vccnz {name}_poll")
            a("s_cmp_eq_u32 s31, 0xff"); a(f"s_cbranch_scc0 {name}_poll")
    a.label(f"{name}_polled")
    stamp()
    for i in range(4):
        a(f"v_add_f32 {v(GA+4*i)}, {v(GA+4*i)}, {v(GA+16+4*i)}"); a(f"v_add_f32 {v(GA+4*i+2)}, {v(GA+4*i+2)}, {v(GA+16+4*i+2)}")
        a(f"v_cvt_pk_bf16_f32 {v(T+4+i)}, {v(GA+4*i)}, {v(GA+4*i+2)}")
    a(f"v_lshlrev_b32 {v(t0)}, 2, v0")
    a(f"ds_write2st64_b32 {v(t0)}, {v(T+4)}, {v(T+5)} offset0:{LDS_Q//256} offset1:{LDS_Q//256+1}")
    a(f"ds_write2st64_b32 {v(t0)}, {v(T+6)}, {v(T+7)} offset0:{LDS_Q//256+2} offset1:{LDS_Q//256+3}")
    a(f"v_cmp_ne_u32 vcc, s63, {v(GA+32)}")
    a("s_cmp_eq_u64 vcc, 0"); a("s_cselect_b32 s29, 1, 0")
    a(f"v_mov_b32 {v(t0)}, 0"); a(f"v_mov_b32 {v(t1)}, s29")
    a(f"ds_write_b32 {v(t0)}, {v(t1)} offset:{LDS_FL}")
    a("s_waitcnt lgkmcnt(0)")
    a("s_barrier")
    tail_loads()
    if prio: a("s_setprio 0")
    init_state()
    a(f"s_branch {name}_join")
    a.label(f"{name}_w0wait")
    if loopbar:
        for i in range(8): a("s_barrier")
    a(f"s_branch {name}_last")
    a.label(f"{name}_tg0")
    if codewarm:
        a("s_getpc_b64 s[96:97]")
        a.label(f"{name}_pc0")
        a(f"s_sub_u32 s96, s96, {name}_pc0-{name}_tgd"); a("s_subb_u32 s97, s97, 0")
        for i in range(codewarm):
            a(f"s_load_dword s98, s[96:97], {64*i}")
            if i % 8 == 7: a("s_waitcnt lgkmcnt(0)")
        a("s_waitcnt lgkmcnt(0)")
    a(f"v_lshlrev_b32 {v(t0)}, 4, v0"); a("s_mov_b32 s30, 0")
    a.label(f"{name}_tg")
    a(f"global_load_dwordx4 {v(GA,4)}, {v(t0)}, s[46:47] offset:{WS_XG} sc1")
    a(f"global_load_dwordx4 {v(GA+4,4)}, {v(t0)}, s[46:47] offset:{WS_XG+1024} sc1")
    a("s_add_u32 s30, s30, 1")
    a("s_waitcnt vmcnt(0)")
    for i in (1, 3, 5, 7): a(f"v_xor_b32 {v(GA+i)}, s61, {v(GA+i)}")
    a(f"v_or3_b32 {v(GA+1)}, {v(GA+1)}, {v(GA+3)}, {v(GA+5)}"); a(f"v_or_b32 {v(GA+1)}, {v(GA+1)}, {v(GA+7)}")
    a(f"v_cmp_ne_u32 vcc, 0, {v(GA+1)}")
    a(f"s_cmp_gt_u32 s30, {SPIN_MAX}"); a(f"s_cbranch_scc1 {name}_tgd")
    a(f"s_cbranch_vccnz {name}_tg")
    a(f"s_branch {name}_tgd")
    nst[0] = nst_end
    return LDS_END

def build(fn, **kw):
    a = Asm(); name = KN + "_kernel"
    lds = gen_fused(a, name, **kw)
    out = f"; @launch grid=(256,1,1) block=(512,1,1) lds={lds}\n" + '.amdgcn_target "amdgcn-amd-amdhsa--gfx950"\n.text\n' + a.text()
    out += '.section .rodata,"a"\n' + kd(name, a.maxv + 1, max(a.maxs + 1, 16))
    open(fn, "w").write(out)

if __name__ == "__main__":
    RP = [3,3,2,2,1,1,0,0,0]
    build("v13.s", rprio=RP)
    build("t_a.s", rprio=RP, local=False)
    build("t_b.s", rprio=RP, gmap=1)
    build("t_c.s", rprio=RP, vpol="")
    build("t_as.s", rprio=RP, local=False, stamps=True)
    build("t_bs.s", rprio=RP, gmap=1, stamps=True)
```

```python
import sys
from asmlib import *
from gen import allreduce, rne1, rne2, unpack, ln_stats, ln_pair, kernel_head, kd, transp_mfma, LOG2E, SCALE, KN
WS_EP = 0x0; WS_XG = 0x400; WS_QG = 0x10000; WS_OP = 0x40000; WS_ML = 0xC0000; WS_YP = 0xD0000
WS_STAMP = 0x10000000
SPIN_MAX = 400000

def ln_stats_fast(a, X, mb, sq, rc, t0, t1, t2, t3, D, sp):
    a(f"v_readfirstlane_b32 s{sp}, {v(X[0])}")
    a(f"s_mov_b32 s{sp+1}, s{sp}")
    for i in range(0, 8, 2): a(f"v_pk_add_f32 {v(D+i,2)}, {v(X[i],2)}, s[{sp}:{sp+1}] neg_lo:[0,1] neg_hi:[0,1]")
    a(f"v_pk_mul_f32 {v(D+8,2)}, {v(D,2)}, {v(D,2)}"); a(f"v_pk_add_f32 {v(D+10,2)}, {v(D,2)}, {v(D+2,2)}")
    a(f"v_pk_fma_f32 {v(D+8,2)}, {v(D+2,2)}, {v(D+2,2)}, {v(D+8,2)}"); a(f"v_pk_add_f32 {v(D,2)}, {v(D+4,2)}, {v(D+6,2)}")
    a(f"v_pk_fma_f32 {v(D+8,2)}, {v(D+4,2)}, {v(D+4,2)}, {v(D+8,2)}"); a(f"v_pk_add_f32 {v(D+10,2)}, {v(D+10,2)}, {v(D,2)}")
    a(f"v_pk_fma_f32 {v(D+8,2)}, {v(D+6,2)}, {v(D+6,2)}, {v(D+8,2)}")
    a(f"v_add_f32 {v(t0)}, {v(D+10)}, {v(D+11)}"); a(f"v_add_f32 {v(t1)}, {v(D+8)}, {v(D+9)}")
    a(f"v_permlane32_swap_b32 {v(t0)}, {v(t1)}"); a(f"v_add_f32 {v(t0)}, {v(t0)}, {v(t1)}")
    allreduce(a, "v_add_f32", t0, t2, lanes=32)
    a(f"v_readlane_b32 s{sp+3}, {v(t0)}, 0"); a(f"v_readlane_b32 s{sp+2}, {v(t0)}, 32")
    a(f"v_mov_b32 {v(t2)}, {f32hex(1/512)}")
    a(f"v_mul_f32 {v(t0)}, s{sp+3}, {v(t2)}")
    a(f"v_mul_f32 {v(t1)}, s{sp+2}, {v(t2)}")
    a(f"v_add_f32 {v(t3)}, s{sp}, {v(t0)}")
    a(f"v_fma_f32 {v(t1)}, -{v(t0)}, {v(t0)}, {v(t1)}")
    a(f"v_max_f32 {v(t1)}, 0, {v(t1)}")
    rne2(a, mb, t1, t3, t1, t2)
    a(f"v_add_f32 {v(t1)}, {f32hex(1e-5)}, {v(t1)}")
    rne1(a, t1, t1, t2)
    a(f"v_sqrt_f32 {v(t1)}, {v(t1)}")
    rne1(a, sq, t1, t2)
    a(f"v_rcp_f32 {v(rc)}, {v(sq)}")

def gen_fused(a, name, kvpol="nt", stamps=False, first=4, prio=True, wopol="nt", qpol="nt", ps2=0, ps3=0, local=True, ldsround=7, loopbar=False, tailround=-1, noq=0, notail=False, stop=False, blockmap=False, kfirst=False, tailpart=3, vpol=None, rep8=False, qsleep=8, xgfirst=False, xglast=True, qdelay=0, rot=0, noclr=False, dup=False, yst='sc1', yld='sc1', gmap=0, fastln=True, pk=True, fine=False, rprio=None, nocomp=False, bare=False, p3x=True, dbgst=False, codewarm=0, qx=0, kvx=0):
    if vpol is None: vpol = kvpol
    vK0, vK1, vV0, vV1 = 1, 2, 3, 4
    m, negm, l, alR, mnew, al, tm = 5, 6, 7, 8, 9, 10, 11
    S = 12; P = 20; C4 = 24; Q = 28; O = 44; T = 76
    DA = 108
    KA, VA, KB, VB = 112, 144, 176, 208
    M = 240
    WO = M; W1, B1, W2 = M+8, M+10, M+12; XR = M+14; DUM = M+15
    LDS_XN = 0; LDS_Q = 1024; LDS_FL = 2048; LDS_ML = 2304
    LDS_C = 2560; LDS_R2 = LDS_C + 2048; LDS_FR = LDS_R2 + 1024; LDS_H = LDS_FR + 256
    LDS_OM = LDS_H + 2048; LDS_R1 = LDS_OM + 16384; LDS_D = LDS_R1 + 8192; LDS_END = LDS_D + 7*16384
    assert LDS_OM % 256 == 0 and LDS_R1 // 256 + 28 < 256 and LDS_R2 % 256 == 0
    nst = [0]
    def stamp():
        if stamps:
            a(f"s_memrealtime s[{64+2*nst[0]}:{65+2*nst[0]}]"); nst[0] += 1
    def tail_loads():
        t0, t1, t2 = C4, C4+1, C4+2
        if notail: return
        a("s_lshl_b32 s29, s20, 19"); a("s_and_b32 s30, s21, 1"); a("s_lshl_b32 s30, s30, 18"); a("s_add_u32 s29, s29, s30")
        a("s_lshl_b32 s30, s3, 10"); a("s_add_u32 s29, s29, s30"); a("s_lshr_b32 s30, s21, 1"); a("s_lshl_b32 s30, s30, 6"); a("s_add_u32 s29, s29, s30")
        a(f"v_lshrrev_b32 {v(t0)}, 2, v0"); a(f"v_lshlrev_b32 {v(t0)}, 13, {v(t0)}"); a(f"v_and_b32 {v(t1)}, 3, v0")
        a(f"v_lshl_add_u32 {v(t0)}, {v(t1)}, 4, {v(t0)}"); a(f"v_add_u32 {v(t0)}, s29, {v(t0)}"); a(f"v_add_u32 {v(t1)}, 0x20000, {v(t0)}")
        a("s_waitcnt lgkmcnt(0)")
        if tailpart & 1:
            a(f"global_load_dwordx4 {v(WO,4)}, {v(t0)}, s[48:49] {wopol}"); a(f"global_load_dwordx4 {v(WO+4,4)}, {v(t1)}, s[48:49] {wopol}")
        if not tailpart & 2: return
        a("s_lshl_b32 s29, s3, 8"); a(f"v_lshl_add_u32 {v(t0)}, v0, 2, s29")
        a(f"v_add_u32 {v(t1)}, 2048, {v(t0)}"); a(f"v_min_u32 {v(t1)}, {895*4}, {v(t1)}")
        a(f"v_lshrrev_b32 {v(t2)}, 1, {v(t0)}")
        for (r, sp) in ((W1, "s[52:53]"), (B1, "s[54:55]"), (W2, "s[56:57]")):
            a(f"global_load_dword {v(r)}, {v(t0)}, {sp}"); a(f"global_load_dword {v(r+1)}, {v(t1)}, {sp}")
        a(f"global_load_ushort {v(XR)}, {v(t2)}, s[36:37]")
        a(f"global_load_ushort {v(DUM)}, {v(t2)}, s[50:51]")
    def init_state():
        a(f"v_mov_b32 {v(m)}, 0xff800000"); a(f"v_mov_b32 {v(l)}, 0"); a(f"v_mov_b32 {v(negm)}, 0")
        for i in range(32): a(f"v_mov_b32 {v(O+i)}, 0")
        a(f"v_bfe_u32 {v(tm)}, v0, 2, 2"); a(f"v_lshrrev_b32 {v(al)}, 4, v0")
        a(f"v_lshlrev_b32 {v(tm)}, 8, {v(tm)}"); a(f"v_lshl_add_u32 {v(tm)}, {v(al)}, 4, {v(tm)}")
        a("s_waitcnt lgkmcnt(0)")
        a("s_load_dword s60, s[58:59], 0")
        a("s_add_u32 s61, s61, 0x9e3779b9")
    def late_setup():
        a("s_load_dwordx2 s[48:49], s[0:1], 32")
        a("s_load_dwordx8 s[52:59], s[0:1], 48")
        a("s_load_dwordx2 s[50:51], s[0:1], 80")
        a(f"s_load_dword s61, s[46:47], {WS_EP}")
        a("s_getreg_b32 s63, hwreg(HW_REG_XCC_ID, 0, 4)")
        a("s_mov_b32 s25, 0x05040100"); a("s_mov_b32 s26, 0x07060302")
        a(f"s_mov_b32 s27, {f32hex(LOG2E)}"); a(f"s_mov_b32 s28, {f32hex(SCALE)}")
    def kv_setup():
        a("s_lshl_b32 s29, s3, 13")
        if blockmap:
            a("s_mul_i32 s29, s3, 0x12000"); a("s_sub_u32 s29, s29, 0x10000"); a("s_max_i32 s29, s29, 0")
        if rot:
            a(f"s_mul_i32 s30, s2, {rot}"); a("s_lshl_b32 s30, s30, 13"); a("s_add_u32 s29, s29, s30"); a("s_and_b32 s29, s29, 0x7ffff")
        a(f"v_and_b32 {v(vK0)}, 3, v0"); a(f"v_lshlrev_b32 {v(vK0)}, 10, {v(vK0)}")
        a(f"v_bfe_u32 {v(tm)}, v0, 2, 2"); a(f"v_lshl_add_u32 {v(vK0)}, {v(tm)}, 8, {v(vK0)}")
        a(f"v_lshrrev_b32 {v(tm)}, 4, v0"); a(f"v_lshl_add_u32 {v(vK0)}, {v(tm)}, 4, {v(vK0)}")
        a(f"v_add_u32 {v(vK0)}, s29, {v(vK0)}"); a(f"v_add_u32 {v(vK1)}, 0x1000, {v(vK0)}")
        a(f"v_lshlrev_b32 {v(vV0)}, 4, v0"); a(f"v_add_u32 {v(vV0)}, s29, {v(vV0)}"); a(f"v_add_u32 {v(vV1)}, 0x1000, {v(vV0)}")
        a("s_lshl_b32 s29, s20, 24"); a(f"s_xor_b32 s30, s21, {kvx}"); a("s_lshl_b32 s30, s30, 19"); a("s_add_u32 s29, s29, s30")
        a("s_mov_b32 s10, 0x80000"); a("s_mov_b32 s11, 0x20000"); a("s_mov_b32 s14, 0x80000"); a("s_mov_b32 s15, 0x20000")
        a("s_waitcnt lgkmcnt(0)")
        a("s_add_u32 s8, s38, s29"); a("s_addc_u32 s9, s39, 0")
        a("s_add_u32 s12, s40, s29"); a("s_addc_u32 s13, s41, 0")
    def fold8(A):
        for c in range(4): a(f"v_permlane32_swap_b32 {v(A+c)}, {v(A+c+4)}")
        for c in range(4): a(f"v_add_f32 {v(A+c)}, {v(A+c)}, {v(A+c+4)}")
        for c in range(2): a(f"v_permlane16_swap_b32 {v(A+c)}, {v(A+c+2)}")
        for c in range(2): a(f"v_add_f32 {v(A+c)}, {v(A+c)}, {v(A+c+2)}")
        for rr in (8, 4):
            for c in range(2): a(f"v_add_f32_dpp {v(A+c)}, {v(A+c)}, {v(A+c)} row_ror:{rr} {DPPM}")
    kernel_head(a, name)
    a("s_cmp_ge_u32 s2, 256"); a(f"s_cbranch_scc1 {name}_end")
    stamp()
    a("s_load_dwordx8 s[36:43], s[0:1], 0")
    a("s_load_dwordx2 s[46:47], s[0:1], 96")
    a("v_lshrrev_b32 v1, 6, v0")
    a("v_readfirstlane_b32 s3, v1")
    a("v_and_b32 v0, 63, v0")
    if gmap == 0:
        a("s_and_b32 s20, s2, 7"); a("s_lshr_b32 s21, s2, 3")
    else:
        a("s_lshr_b32 s20, s2, 5"); a("s_and_b32 s21, s2, 31")
    a("s_cmp_eq_u32 s3, 0"); a(f"s_cbranch_scc1 {name}_w0")
    a(f"s_mov_b32 s22, {0x2000 if blockmap else 0xe000}")
    kv_setup()
    cnt = [0]
    def hook():
        cnt[0] += 1
        if cnt[0] == first + 1:
            late_setup()
            a("s_barrier")
    VQ = []
    def adv(r0, r1):
        a(f"v_add_u32 {v(r0)}, s22, {v(r0)}")
        if rot:
            a(f"v_and_b32 {v(r0)}, 0x7ffff, {v(r0)}"); a(f"v_add_u32 {v(r1)}, 0x1000, {v(r0)}")
        else: a(f"v_add_u32 {v(r1)}, s22, {v(r1)}")
    def wait_for(lab):
        if lab not in VQ: return
        idx = max(i for i, x in enumerate(VQ) if x == lab)
        n = len(VQ) - 1 - idx
        a(f"s_waitcnt vmcnt({min(n, 63)})")
        del VQ[:idx+1]
    def dmaK(lab):
        for j in range(8):
            a(f"s_add_u32 m0, s24, {j*1024 - (j&3)*64}")
            a(f"buffer_load_dwordx4 {v(vK0 if j < 4 else vK1)}, s[8:11], 0 offen offset:{(j&3)*64} {kvpol} lds"); VQ.append(lab)
        adv(vK0, vK1)
    def dmaV(lab):
        for j in range(8):
            if (j & 3) == 0: a(f"s_add_u32 m0, s24, {8192 + (j>>2)*4096}")
            a(f"buffer_load_dwordx4 {v(vV0 if j < 4 else vV1)}, s[12:15], 0 offen offset:{(j&3)*1024} {vpol} lds"); VQ.append(lab)
        adv(vV0, vV1)
    def loadK(K, pc=False, lab="x"):
        for j in range(8):
            if pc: hook()
            VQ.append(lab)
            a(f"buffer_load_dwordx4 {v(K+4*j,4)}, {v(vK0 if j < 4 else vK1)}, s[8:11], 0 offen offset:{(j&3)*64} {kvpol}")
        adv(vK0, vK1)
    def loadV(V, pc=False, lab="x"):
        for j in range(8):
            if pc: hook()
            VQ.append(lab)
            a(f"buffer_load_dwordx4 {v(V+4*j,4)}, {v(vV0 if j < 4 else vV1)}, s[12:15], 0 offen offset:{(j&3)*1024} {vpol}")
        adv(vV0, vV1)
    if stamps:
        a("s_mov_b64 s[66:67], 0"); a("s_mov_b64 s[68:69], 0")
    nst_save = nst[0]; nst[0] += 2
    loadK(KA, True, "K0"); loadV(VA, True, "V0"); loadK(KB, True, "K1"); loadV(VB, True, "V1")
    a("s_lshl_b32 s24, s3, 14"); a(f"s_add_u32 s24, s24, {LDS_D - 16384}")
    if ldsround < 9:
        dmaK(f"K{ldsround}"); dmaV(f"V{ldsround}")
    if tailround < 0:
        tail_loads(); VQ.extend(["t"] * (0 if notail else (2 if tailpart & 1 else 0) + (8 if tailpart & 2 else 0)))
    init_state()
    a("s_barrier")
    a.label(f"{name}_join")
    for t in range(4): a(f"ds_read_b128 {v(Q+4*t,4)}, {v(tm)} offset:{LDS_Q+64*t}")
    a(f"v_mov_b32 {v(al)}, 0")
    a(f"ds_read_b32 {v(al)}, {v(al)} offset:{LDS_FL}")
    a("s_waitcnt lgkmcnt(0)")
    a(f"v_readfirstlane_b32 s62, {v(al)}")
    a("s_lshl_b32 s60, s60, 16")
    stamp()
    a("s_cmp_eq_u32 s3, 0"); a(f"s_cbranch_scc1 {name}_w0wait")
    a(f"v_lshl_add_u32 {v(DA)}, v0, 4, s24")
    if dup:
        a("s_mov_b32 s99, 0")
        a.label(f"{name}_again")
    NR = 9
    def tile(r):
        if nocomp:
            real = a
            class F:
                def __call__(self, s_):
                    if s_.startswith(("v_mfma", "v_cvt", "v_mul", "v_max", "v_exp", "v_fma", "v_perm", "v_add_f32", "v_lshlrev_b32", "v_and_b32", "v_cmp", "s_cbranch_vccz", "v_mov", "v_sub")): return
                    real(s_)
                def __getattr__(self, n): return getattr(real, n)
            return tile2(r, F())
        return tile2(r, a)
    def tile2(r, a):
        K, V = (KA, VA) if r % 2 == 0 else (KB, VB)
        nxt = r + 2
        fromlds = r == ldsround
        if r == NR - 1:
            a.fence(); a.label(f"{name}_last")
        if rprio and (r == 0 or rprio[r] != rprio[r-1]): a(f"s_setprio {rprio[r]}")
        if fromlds: a("s_waitcnt lgkmcnt(0)")
        else: wait_for(f"K{r}")
        for t in range(4):
            for g in range(2):
                c = "0" if t == 0 else v(S+4*g, 4)
                a(f"v_mfma_f32_16x16x32_bf16 {v(S+4*g,4)}, {v(K+16*g+4*t,4)}, {v(Q+4*t,4)}, {c}")
        if nxt == ldsround:
            wait_for(f"K{nxt}")
            for j in range(8): a(f"ds_read_b128 {v(K+4*j,4)}, {v(DA)} offset:{1024*j}")
        elif nxt < NR: loadK(K, lab=f"K{nxt}")
        for i in range(4): a(f"v_cvt_pk_bf16_f32 {v(C4+i)}, {v(S+2*i)}, {v(S+2*i+1)}")
        for i in range(4): unpack(a, S+2*i, S+2*i+1, C4+i)
        for i in range(8): a(f"v_mul_f32 {v(S+i)}, s28, {v(S+i)}")
        for i in range(4): a(f"v_cvt_pk_bf16_f32 {v(C4+i)}, {v(S+2*i)}, {v(S+2*i+1)}")
        for i in range(4): unpack(a, S+2*i, S+2*i+1, C4+i)
        a(f"v_max3_f32 {v(mnew)}, {v(m)}, {v(S)}, {v(S+1)}")
        for i in range(1, 4): a(f"v_max3_f32 {v(mnew)}, {v(mnew)}, {v(S+2*i)}, {v(S+2*i+1)}")
        a(f"v_cmp_gt_f32 vcc, {v(mnew)}, {v(m)}")
        a(f"s_cbranch_vccz {name}_skip{r}")
        a(f"v_mov_b32 {v(tm)}, {v(mnew)}"); a(f"v_permlane16_swap_b32 {v(mnew)}, {v(tm)}"); a(f"v_max_f32 {v(mnew)}, {v(mnew)}, {v(tm)}")
        a(f"v_mov_b32 {v(tm)}, {v(mnew)}"); a(f"v_permlane32_swap_b32 {v(mnew)}, {v(tm)}"); a(f"v_max_f32 {v(mnew)}, {v(mnew)}, {v(tm)}")
        a(f"v_sub_f32 {v(al)}, {v(m)}, {v(mnew)}"); a(f"v_mul_f32 {v(al)}, s27, {v(al)}"); a(f"v_exp_f32 {v(al)}, {v(al)}")
        a(f"v_mov_b32 {v(m)}, {v(mnew)}")
        a(f"v_mul_f32_e64 {v(negm)}, -{v(mnew)}, s27")
        a(f"v_mul_f32 {v(l)}, {v(l)}, {v(al)}")
        for rr in range(4): a(f"v_mov_b32_dpp {v(alR)}, {v(al)} row_newbcast:{4*rr} row_mask:{hex(1<<rr)} bank_mask:0xf")
        for e in range(8): a(f"v_mul_f32 {v(O+4*e)}, {v(alR)}, {v(O+4*e)}")
        a.label(f"{name}_skip{r}")
        for i in range(8): a(f"v_fma_f32 {v(S+i)}, {v(S+i)}, s27, {v(negm)}")
        for i in range(8): a(f"v_exp_f32 {v(S+i)}, {v(S+i)}")
        for i in range(4): a(f"v_cvt_pk_bf16_f32 {v(P+i)}, {v(S+2*i)}, {v(S+2*i+1)}")
        for i in range(4): a(f"v_add_f32 {v(C4+i)}, {v(S+2*i)}, {v(S+2*i+1)}")
        a(f"v_add_f32 {v(C4)}, {v(C4)}, {v(C4+1)}"); a(f"v_add_f32 {v(C4+2)}, {v(C4+2)}, {v(C4+3)}")
        a(f"v_add_f32 {v(C4)}, {v(C4)}, {v(C4+2)}"); a(f"v_add_f32 {v(l)}, {v(l)}, {v(C4)}")
        if not fromlds: wait_for(f"V{r}")
        def pre():
            if nxt == ldsround:
                wait_for(f"V{nxt}")
                for j in range(8): a(f"ds_read_b128 {v(V+4*j,4)}, {v(DA)} offset:{8192+1024*j}")
            elif nxt < NR: loadV(V, lab=f"V{nxt}")
        transp_mfma(a, V, T, P, O, 25, 26, between=pre)
        if tailround == 100 and r < 7:
            a(f"s_cmp_lg_u32 s3, {r+1}"); a(f"s_cbranch_scc1 {name}_tl{r}")
            tail_loads()
            a.label(f"{name}_tl{r}")
        if r == tailround:
            tail_loads(); VQ.extend(["t"] * (0 if notail else (2 if tailpart & 1 else 0) + (8 if tailpart & 2 else 0)))
        if r < NR - 1 and loopbar: a("s_barrier")
    for r in range(NR): tile(r)
    if dup:
        a.fence()
        a("s_cmp_eq_u32 s3, 0"); a(f"s_cbranch_scc1 {name}_nodup")
        a("s_cmp_eq_u32 s99, 1"); a(f"s_cbranch_scc1 {name}_nodup")
        a("s_mov_b32 s99, 1")
        kv_setup()
        loadK(KA); loadV(VA); loadK(KB); loadV(VB); dmaK("x"); dmaV("x"); tail_loads()
        a(f"v_mov_b32 {v(m)}, 0xff800000"); a(f"v_mov_b32 {v(l)}, 0"); a(f"v_mov_b32 {v(negm)}, 0")
        for i in range(32): a(f"v_mov_b32 {v(O+i)}, 0")
        a(f"s_branch {name}_again")
        a.label(f"{name}_nodup")
    stamp()
    t0, t1, t2, t3 = C4, C4+1, C4+2, C4+3
    if stop:
        for i in range(5): stamp()
        a(f"s_branch {name}_fin2")
        nst[0] -= 5
    a.fence()
    a("s_cmp_eq_u32 s3, 0"); a(f"s_cbranch_scc1 {name}_tg0")
    a.label(f"{name}_tgd")
    a(f"v_mov_b32 {v(tm)}, {v(l)}"); a(f"v_permlane16_swap_b32 {v(l)}, {v(tm)}"); a(f"v_add_f32 {v(l)}, {v(l)}, {v(tm)}")
    a("s_lshl_b32 s29, s3, 11")
    a(f"v_lshl_add_u32 {v(t0)}, v0, 2, s29")
    a(f"v_mov_b32 {v(tm)}, {v(l)}"); a(f"v_permlane32_swap_b32 {v(l)}, {v(tm)}"); a(f"v_add_f32 {v(S+1)}, {v(l)}, {v(tm)}")
    a("s_lshl_b32 s29, s3, 3")
    a(f"v_lshl_add_u32 {v(al)}, v0, 4, s29")
    a(f"v_mul_f32 {v(S)}, s27, {v(m)}")
    a("s_mov_b64 exec, 0x1111")
    a(f"ds_write_b64 {v(al)}, {v(S,2)} offset:{LDS_ML}")
    a("s_mov_b64 exec, -1")
    for k in range(4): a(f"ds_write2st64_b32 {v(t0)}, {v(O+8*k)}, {v(O+8*k+4)} offset0:{LDS_OM//256+2*k} offset1:{LDS_OM//256+2*k+1}")
    a(f"v_lshrrev_b32 {v(tm)}, 4, v0"); a(f"v_lshlrev_b32 {v(tm)}, 6, {v(tm)}")
    a("s_lshl_b32 s30, s3, 8")
    a(f"v_lshl_add_u32 {v(al)}, v0, 2, s30")
    a("s_lshl_b32 s30, s20, 16"); a("s_lshl_b32 s34, s21, 10"); a("s_add_u32 s30, s30, s34"); a("s_lshl_b32 s34, s3, 7"); a("s_add_u32 s30, s30, s34")
    a(f"s_add_u32 s30, s30, {WS_OP}")
    a(f"v_lshrrev_b32 {v(t1)}, 5, v0"); a(f"v_lshlrev_b32 {v(t1)}, 15, {v(t1)}"); a(f"v_and_b32 {v(t2)}, 31, v0")
    a(f"v_lshl_add_u32 {v(t1)}, {v(t2)}, 2, {v(t1)}"); a(f"v_add_u32 {v(t1)}, s30, {v(t1)}")
    a("s_lshl_b32 s30, s20, 10"); a("s_lshl_b32 s34, s21, 3"); a("s_add_u32 s30, s30, s34")
    a(f"s_add_u32 s30, s30, {WS_ML}"); a(f"v_lshl_add_u32 {v(P)}, v0, 4, s30")
    a("s_mov_b32 s6, 0x00010001"); a("s_mov_b32 s7, 0x00010001")
    a("s_waitcnt lgkmcnt(0)")
    a("s_barrier")
    for i in range(4): a(f"ds_read_b128 {v(T+4*i,4)}, {v(tm)} offset:{LDS_ML+16*i}")
    for w in range(0, 8, 2):
        a(f"ds_read2st64_b32 {v(T+16+w,2)}, {v(al)} offset0:{LDS_OM//256 + 8*w} offset1:{LDS_OM//256 + 8*(w+1)}")
    ML = VA; OO = KB; ACC = VA + 8; CW = VA + 16; vx = VA + 4; U = VA + 24
    aML = KA; aO = KA + 1
    a("s_and_b32 s33, s21, 1")
    a("s_lshl_b32 s29, s20, 10"); a("s_lshl_b32 s30, s33, 9"); a("s_add_u32 s29, s29, s30"); a(f"s_add_u32 s29, s29, {WS_ML}")
    a(f"v_lshl_add_u32 {v(aML)}, {v(t2)}, 4, s29")
    a("s_lshl_b32 s29, s20, 16"); a("s_lshl_b32 s30, s33, 15"); a("s_add_u32 s29, s29, s30"); a("s_lshl_b32 s30, s3, 12"); a("s_add_u32 s29, s29, s30")
    a(f"s_add_u32 s29, s29, {WS_OP}")
    a(f"v_lshl_add_u32 {v(aO)}, v0, 4, s29")
    a("s_waitcnt lgkmcnt(4)")
    Mx = S
    a(f"v_max3_f32 {v(Mx)}, {v(T)}, {v(T+2)}, {v(T+4)}"); a(f"v_max3_f32 {v(t0)}, {v(T+6)}, {v(T+8)}, {v(T+10)}")
    a(f"v_max3_f32 {v(Mx)}, {v(Mx)}, {v(T+12)}, {v(T+14)}"); a(f"v_max_f32 {v(Mx)}, {v(Mx)}, {v(t0)}")
    for w in range(8): a(f"v_sub_f32 {v(T+2*w)}, {v(T+2*w)}, {v(Mx)}")
    for w in range(8): a(f"v_exp_f32 {v(T+2*w)}, {v(T+2*w)}")
    a("s_waitcnt lgkmcnt(0)")
    a(f"v_mul_f32 {v(S+2)}, {v(T)}, {v(T+16)}"); a(f"v_mul_f32 {v(S+3)}, {v(T+2)}, {v(T+17)}")
    for w in range(2, 8): a(f"v_fmac_f32 {v(S+2+(w&1))}, {v(T+2*w)}, {v(T+16+w)}")
    a(f"v_add_f32 {v(S+2)}, {v(S+2)}, {v(S+3)}")
    a(f"v_min_u32 {v(S+2)}, -2, {v(S+2)}")
    def dual_store(txt, lab):
        if local:
            a("s_cmp_eq_u32 s62, 1"); a(f"s_cbranch_scc1 {name}_{lab}a")
            a(txt + " sc1"); a(f"s_branch {name}_{lab}b")
            a.label(f"{name}_{lab}a"); a(txt); a.label(f"{name}_{lab}b")
        else: a(txt + " sc1")
    dual_store(f"global_store_dword {v(t1)}, {v(S+2)}, s[46:47]", "so")
    a("s_cmp_lg_u32 s3, 0"); a(f"s_cbranch_scc1 {name}_noml")
    a(f"v_mul_f32 {v(S+1)}, {v(T)}, {v(T+1)}"); a(f"v_mul_f32 {v(S+3)}, {v(T+2)}, {v(T+3)}")
    for w in range(2, 8): a(f"v_fmac_f32 {v(S+1+2*(w&1))}, {v(T+2*w)}, {v(T+2*w+1)}")
    a(f"v_add_f32 {v(S+1)}, {v(S+1)}, {v(S+3)}")
    a(f"v_min_u32 {v(S)}, -2, {v(Mx)}"); a(f"v_min_u32 {v(S+1)}, -2, {v(S+1)}")
    a("s_mov_b64 exec, s[6:7]")
    dual_store(f"global_store_dwordx2 {v(P)}, {v(S,2)}, s[46:47]", "sm")
    a("s_mov_b64 exec, -1")
    a.label(f"{name}_noml")
    stamp()
    a("s_mov_b32 s30, 0"); a("s_mov_b32 s31, 0")
    WU = VB
    a(f"s_lshl_b32 s29, s3, 8"); a(f"v_lshl_add_u32 {v(t1)}, {v(t2)}, 3, s29")
    a(f"v_bfe_u32 {v(t3)}, v0, 2, 1"); a("s_lshl_b32 s34, s3, 4"); a("s_add_u32 s29, s29, s34"); a(f"v_lshl_add_u32 {v(t3)}, {v(t3)}, 7, s29")
    a.label(f"{name}_p2")
    a(f"global_load_dwordx4 {v(ML,4)}, {v(aML)}, s[46:47] sc1")
    a("s_cmp_eq_u32 s31, 1"); a(f"s_cbranch_scc1 {name}_p2m")
    for i in range(4):
        a(f"global_load_dwordx4 {v(OO+4*i,4)}, {v(aO)}, s[46:47] offset:{1024*i} sc1")
    a("s_waitcnt vmcnt(0)")
    a(f"v_max3_u32 {v(vx)}, {v(OO)}, {v(OO+1)}, {v(OO+2)}"); a(f"v_max3_u32 {v(vx+1)}, {v(OO+3)}, {v(OO+4)}, {v(OO+5)}")
    for i in range(6, 14, 4):
        a(f"v_max3_u32 {v(vx)}, {v(vx)}, {v(OO+i)}, {v(OO+i+1)}"); a(f"v_max3_u32 {v(vx+1)}, {v(vx+1)}, {v(OO+i+2)}, {v(OO+i+3)}")
    a(f"v_max3_u32 {v(vx)}, {v(vx)}, {v(OO+14)}, {v(OO+15)}"); a(f"v_max_u32 {v(vx)}, {v(vx)}, {v(vx+1)}")
    a(f"v_cmp_eq_u32 vcc, -1, {v(vx)}")
    a("s_cmp_eq_u64 vcc, 0"); a("s_cselect_b32 s31, 1, 0")
    a.label(f"{name}_p2m")
    a("s_add_u32 s30, s30, 1")
    a("s_waitcnt vmcnt(0)")
    a(f"v_max3_u32 {v(vx)}, {v(ML)}, {v(ML+1)}, {v(ML+2)}"); a(f"v_max_u32 {v(vx)}, {v(vx)}, {v(ML+3)}")
    a(f"v_cmp_eq_u32 vcc, -1, {v(vx)}")
    a(f"s_cmp_gt_u32 s30, {SPIN_MAX}"); a(f"s_cbranch_scc1 {name}_p2d")
    a(f"s_cbranch_vccnz {name}_p2s")
    a("s_cmp_eq_u32 s31, 1"); a(f"s_cbranch_scc1 {name}_p2d")
    a.label(f"{name}_p2s")
    if ps2: a(f"s_sleep {ps2}")
    a(f"s_branch {name}_p2")
    a.label(f"{name}_p2d")
    stamp()
    a(f"v_max_f32 {v(t0)}, {v(ML)}, {v(ML+2)}")
    allreduce(a, "v_max_f32", t0, tm, lanes=16)
    a(f"v_sub_f32 {v(vx)}, {v(ML)}, {v(t0)}"); a(f"v_sub_f32 {v(vx+1)}, {v(ML+2)}, {v(t0)}")
    a(f"v_exp_f32 {v(vx)}, {v(vx)}"); a(f"v_exp_f32 {v(vx+1)}, {v(vx+1)}")
    a(f"ds_write_b64 {v(t1)}, {v(vx,2)} offset:{LDS_C}")
    a(f"v_mul_f32 {v(t0)}, {v(vx)}, {v(ML+1)}"); a(f"v_fmac_f32 {v(t0)}, {v(vx+1)}, {v(ML+3)}")
    a("s_waitcnt lgkmcnt(0)")
    a(f"ds_read_b128 {v(CW,4)}, {v(t3)} offset:{LDS_C}")
    allreduce(a, "v_add_f32", t0, tm, lanes=16)
    a(f"v_rcp_f32 {v(t0)}, {v(t0)}")
    a("s_lshl_b32 s34, s3, 10"); a(f"v_lshl_add_u32 {v(t1)}, v0, 4, s34")
    a(f"v_lshrrev_b32 {v(t3)}, 2, v0"); a("s_lshl_b32 s34, s3, 7"); a(f"v_lshl_add_u32 {v(t3)}, {v(t3)}, 2, s34")
    a(f"v_readlane_b32 s4, {v(t0)}, 0"); a(f"v_readlane_b32 s5, {v(t0)}, 16")
    a("s_waitcnt lgkmcnt(0)")
    for k in range(4):
        for c in range(4):
            op = "v_mul_f32" if k == 0 else "v_fmac_f32"
            a(f"{op} {v(ACC+c)}, {v(CW+k)}, {v(OO+4*k+c)}")
    a(f"ds_write_b128 {v(t1)}, {v(ACC,4)} offset:{LDS_R1}")
    for c in range(8): unpack(a, WU+2*c, WU+2*c+1, WO+c)
    a(f"v_add_u32 {v(t0)}, 64, {v(t3)}")
    a(f"v_and_b32 {v(t1)}, 3, v0"); a(f"v_lshrrev_b32 {v(tm)}, 4, v0"); a(f"v_lshlrev_b32 {v(t1)}, 5, {v(t1)}"); a(f"v_lshl_add_u32 {v(t1)}, {v(tm)}, 3, {v(t1)}")
    a(f"v_add_u32 {v(t1)}, s34, {v(t1)}")
    a("s_waitcnt lgkmcnt(0)"); a("s_barrier")
    b0 = LDS_R1 // 256
    for k in range(4): a(f"ds_read2st64_b32 {v(U+2*k,2)}, {v(t3)} offset0:{b0+8*k} offset1:{b0+8*k+4}")
    for k in range(4): a(f"ds_read2st64_b32 {v(U+8+2*k,2)}, {v(t0)} offset0:{b0+8*k} offset1:{b0+8*k+4}")
    a(f"v_lshlrev_b32 {v(t2)}, 2, v0")
    a("s_lshl_b32 s29, s20, 12"); a("s_lshl_b32 s30, s33, 11"); a("s_add_u32 s29, s29, s30"); a("s_lshr_b32 s30, s21, 1"); a("s_lshl_b32 s30, s30, 7")
    a("s_add_u32 s29, s29, s30"); a(f"s_add_u32 s29, s29, {WS_YP}")
    if rep8:
        a(f"v_lshrrev_b32 {v(t3)}, 3, v0"); a(f"v_lshlrev_b32 {v(t3)}, 15, {v(t3)}"); a(f"v_and_b32 {v(t2)}, 7, v0"); a(f"v_lshlrev_b32 {v(t2)}, 4, {v(t2)}")
        a(f"v_add3_u32 {v(t3)}, {v(t3)}, {v(t2)}, s29")
    else: a(f"v_add_u32 {v(t3)}, s29, {v(t2)}")
    a("s_mov_b32 s6, 0x000f000f"); a("s_mov_b32 s7, 0x000f000f")
    a("s_waitcnt lgkmcnt(4)")
    for k in range(4): a(f"v_add_f32 {v(U+2*k)}, {v(U+2*k)}, {v(U+2*k+1)}")
    a(f"v_add_f32 {v(U)}, {v(U)}, {v(U+2)}"); a(f"v_add_f32 {v(U+4)}, {v(U+4)}, {v(U+6)}")
    a("s_waitcnt lgkmcnt(0)")
    for k in range(4): a(f"v_add_f32 {v(U+8+2*k)}, {v(U+8+2*k)}, {v(U+8+2*k+1)}")
    a(f"v_add_f32 {v(U+8)}, {v(U+8)}, {v(U+10)}"); a(f"v_add_f32 {v(U+12)}, {v(U+12)}, {v(U+14)}")
    a(f"v_add_f32 {v(U)}, {v(U)}, {v(U+4)}"); a(f"v_add_f32 {v(U+1)}, {v(U+8)}, {v(U+12)}")
    a(f"v_mul_f32 {v(U)}, s4, {v(U)}"); a(f"v_mul_f32 {v(U+1)}, s5, {v(U+1)}")
    rne2(a, U, U+1, U, U+1, t0)
    for c in range(8): a(f"v_mul_f32 {v(WU+c)}, {v(U)}, {v(WU+c)}")
    for c in range(8): a(f"v_fmac_f32 {v(WU+c)}, {v(U+1)}, {v(WU+8+c)}")
    fold8(WU)
    a("s_mov_b64 exec, s[6:7]")
    a(f"ds_write_b64 {v(t1)}, {v(WU,2)} offset:{LDS_R2}")
    a("s_mov_b64 exec, -1")
    a("s_waitcnt lgkmcnt(0)"); a("s_barrier")
    a("s_cmp_lg_u32 s3, 0"); a(f"s_cbranch_scc1 {name}_s3")
    if rep8:
        for w_ in range(8): a(f"ds_read_b128 {v(KB+4*w_,4)}, {v(t2)} offset:{LDS_R2+128*w_}")
        for w_ in range(4):
            a(f"s_waitcnt lgkmcnt({6-2*w_})")
            for c in range(0, 4, 2): a(f"v_pk_add_f32 {v(KB+8*w_+c,2)}, {v(KB+8*w_+c,2)}, {v(KB+8*w_+4+c,2)}")
        for c in range(0, 4, 2): a(f"v_pk_add_f32 {v(KB+c,2)}, {v(KB+c,2)}, {v(KB+8+c,2)}")
        for c in range(0, 4, 2): a(f"v_pk_add_f32 {v(KB+16+c,2)}, {v(KB+16+c,2)}, {v(KB+24+c,2)}")
        for c in range(0, 4, 2): a(f"v_pk_add_f32 {v(KB+c,2)}, {v(KB+c,2)}, {v(KB+16+c,2)}")
        for c in range(4): a(f"v_min_u32 {v(KB+c)}, -2, {v(KB+c)}")
        a(f"global_store_dwordx4 {v(t3)}, {v(KB,4)}, s[46:47] sc1")
    else:
        a(f"ds_read2st64_b32 {v(U,2)}, {v(t2)} offset0:{LDS_R2//256} offset1:{LDS_R2//256+1}")
        a(f"ds_read2st64_b32 {v(U+2,2)}, {v(t2)} offset0:{LDS_R2//256+2} offset1:{LDS_R2//256+3}")
        a("s_waitcnt lgkmcnt(0)")
        a(f"v_add_f32 {v(U)}, {v(U)}, {v(U+1)}"); a(f"v_add_f32 {v(U+2)}, {v(U+2)}, {v(U+3)}"); a(f"v_add_f32 {v(U)}, {v(U)}, {v(U+2)}")
        a(f"v_mov_b32 {v(tm)}, {v(U)}"); a(f"v_permlane32_swap_b32 {v(U)}, {v(tm)}"); a(f"v_add_f32 {v(U)}, {v(U)}, {v(tm)}")
        a(f"v_min_u32 {v(U)}, -2, {v(U)}")
        a("s_mov_b32 exec_hi, 0")
        a(f"global_store_dword {v(t3)}, {v(U)}, s[46:47] {yst}")
        a("s_mov_b64 exec, -1")
    a.fence()
    a.label(f"{name}_s3")
    stamp()
    Y = KA; AY = KB
    if rep8:
        a("s_and_b32 s29, s63, 7"); a("s_lshl_b32 s29, s29, 15"); a(f"v_add_u32 {v(t0)}, s29, {v(al)}")
    for i in range(8): a(f"v_add_u32 {v(AY+i)}, {WS_YP + 0x1000*i}, {v(t0 if rep8 else al)}")
    W1u = [VA, VA+2]; B1u = [VA+4, VA+6]; CC0 = VA+8; ONE = VA+10
    for k in range(2):
        unpack(a, W1u[k], W1u[k]+1, W1+k); unpack(a, B1u[k], B1u[k]+1, B1+k)
    c0 = -2.0 * LOG2E * 0.7978845608028654; c1 = c0 * 0.044715
    a(f"v_mov_b32 {v(CC0)}, {f32hex(c0)}"); a(f"v_mov_b32 {v(CC0+1)}, {f32hex(c0)}"); a(f"v_mov_b32 {v(ONE)}, 1.0"); a(f"v_mov_b32 {v(ONE+1)}, 1.0")
    a(f"s_mov_b32 s4, {f32hex(c1)}"); a(f"s_mov_b32 s5, {f32hex(c1)}")
    a("s_cmp_lt_u32 s3, 6"); a(f"s_cbranch_scc1 {name}_w2ok")
    a(f"v_mov_b32 {v(W2+1)}, 0")
    a.label(f"{name}_w2ok")
    a(f"v_lshlrev_b32 {v(XR)}, 16, {v(XR)}")
    a("s_mov_b32 s30, 0"); a("s_mov_b32 s31, 0")
    vx = KA + 16
    if p3x:
        MK = 80
        for i in range(8): a(f"s_mov_b64 s[{MK+2*i}:{MK+2*i+1}], -1")
        a.label(f"{name}_p3")
        for i in range(8):
            a(f"s_mov_b64 exec, s[{MK+2*i}:{MK+2*i+1}]")
            a(f"global_load_dword {v(Y+2*i)}, {v(AY+i)}, s[46:47] {yld}")
            a(f"global_load_dword {v(Y+2*i+1)}, {v(AY+i)}, s[46:47] offset:2048 {yld}")
        a("s_mov_b64 exec, -1")
        a("s_add_u32 s30, s30, 1")
        for i in range(8):
            a(f"s_waitcnt vmcnt({14-2*i})")
            a(f"v_max_u32 {v(vx+i)}, {v(Y+2*i)}, {v(Y+2*i+1)}")
            a(f"v_cmp_eq_u32 s[{MK+2*i}:{MK+2*i+1}], -1, {v(vx+i)}")
            if i == 1: a(f"s_or_b64 s[34:35], s[{MK}:{MK+1}], s[{MK+2}:{MK+3}]")
            if i > 1: a(f"s_or_b64 s[34:35], s[34:35], s[{MK+2*i}:{MK+2*i+1}]")
        a(f"s_cbranch_scc0 {name}_p3d")
        if ps3: a(f"s_sleep {ps3}")
        a(f"s_cmp_gt_u32 s30, {SPIN_MAX}"); a(f"s_cbranch_scc0 {name}_p3")
    else:
        a.label(f"{name}_p3")
        for i in range(8):
            a(f"s_bitcmp1_b32 s31, {i}"); a(f"s_cbranch_scc1 {name}_p3k{i}")
            a(f"global_load_dword {v(Y+2*i)}, {v(AY+i)}, s[46:47] sc1")
            a(f"global_load_dword {v(Y+2*i+1)}, {v(AY+i)}, s[46:47] offset:2048 sc1")
            a.label(f"{name}_p3k{i}")
        a("s_add_u32 s30, s30, 1")
        a("s_waitcnt vmcnt(0)")
        for i in range(8): a(f"v_max_u32 {v(vx+i)}, {v(Y+2*i)}, {v(Y+2*i+1)}")
        a(f"v_max3_u32 {v(vx+8)}, {v(vx)}, {v(vx+1)}, {v(vx+2)}"); a(f"v_max3_u32 {v(vx+9)}, {v(vx+3)}, {v(vx+4)}, {v(vx+5)}")
        a(f"v_max3_u32 {v(vx+8)}, {v(vx+8)}, {v(vx+6)}, {v(vx+7)}"); a(f"v_max_u32 {v(vx+8)}, {v(vx+8)}, {v(vx+9)}")
        a(f"v_cmp_eq_u32 vcc, -1, {v(vx+8)}")
        a(f"s_cbranch_vccz {name}_p3d")
        a(f"s_cmp_gt_u32 s30, {SPIN_MAX}"); a(f"s_cbranch_scc1 {name}_p3d")
        for i in range(8):
            a(f"v_cmp_eq_u32 vcc, -1, {v(vx+i)}")
            a("s_cmp_eq_u64 vcc, 0"); a(f"s_cselect_b32 s34, {1<<i}, 0"); a("s_or_b32 s31, s31, s34")
        if ps3: a(f"s_sleep {ps3}")
        a(f"s_branch {name}_p3")
    a.label(f"{name}_p3d")
    stamp()
    for k in range(8): a(f"v_add_f32 {v(Y+2*k)}, {v(Y+2*k)}, {v(Y+2*k+1)}")
    for k in range(4): a(f"v_add_f32 {v(Y+4*k)}, {v(Y+4*k)}, {v(Y+4*k+2)}")
    a(f"v_add_f32 {v(Y)}, {v(Y)}, {v(Y+4)}"); a(f"v_add_f32 {v(Y+8)}, {v(Y+8)}, {v(Y+12)}"); a(f"v_add_f32 {v(Y)}, {v(Y)}, {v(Y+8)}")
    rne1(a, Y, Y, t1)
    a(f"v_add_f32 {v(Y)}, {v(Y)}, {v(XR)}")
    rne1(a, Y, Y, t1)
    a(f"ds_write_b32 {v(al)}, {v(Y)} offset:{LDS_H}")
    a(f"v_lshlrev_b32 {v(t2)}, 4, v0")
    a("s_lshl_b32 s29, s2, 3"); a(f"v_mov_b32 {v(t1)}, s29")
    Y = VB
    X = [Y+8+i for i in range(8)]; mb, sq, rc = Y+16, Y+17, Y+18; PK = Y+20; HP = Y+24; HH = Y+26
    a("s_waitcnt lgkmcnt(0)"); a("s_barrier")
    a("s_cmp_lg_u32 s3, 0"); a(f"s_cbranch_scc1 {name}_lnw")
    a(f"ds_read_b128 {v(X[0],4)}, {v(t2)} offset:{LDS_H}"); a(f"ds_read_b128 {v(X[4],4)}, {v(t2)} offset:{LDS_H+1024}")
    a(f"ds_read_b64 {v(HH,2)}, {v(t1)} offset:{LDS_H}")
    a("s_waitcnt lgkmcnt(0)")
    if fine: stamp()
    def stats():
        if fastln: ln_stats_fast(a, X, mb, sq, rc, t0, t1, t2, t3, KB, 32)
        else: ln_stats(a, X, mb, sq, rc, t0, t1, t2)
    stats()
    TA = [KA + 4*i for i in range(5)]
    assert mb % 2 == 0 and rc % 2 == 0
    srcs = [X[2*i] for i in range(4)] + [HH]
    for xs, tb in zip(srcs, TA): a(f"v_pk_add_f32 {v(tb,2)}, {v(xs,2)}, {v(mb,2)} op_sel_hi:[1,0] neg_lo:[0,1] neg_hi:[0,1]")
    for tb in TA: a(f"v_cvt_pk_bf16_f32 {v(tb+2)}, {v(tb)}, {v(tb+1)}")
    for tb in TA: unpack(a, tb, tb+1, tb+2)
    for tb in TA: a(f"v_pk_mul_f32 {v(tb+2,2)}, {v(tb,2)}, {v(rc,2)} op_sel_hi:[1,0]")
    tb = TA[4]
    a(f"v_fma_f32 {v(tb)}, -{v(tb+2)}, {v(sq)}, {v(tb)}"); a(f"v_fma_f32 {v(tb+1)}, -{v(tb+3)}, {v(sq)}, {v(tb+1)}")
    for t_ in TA[:4]: a(f"v_cvt_pk_bf16_f32 {v(t_)}, {v(t_+2)}, {v(t_+3)}")
    a(f"v_fmac_f32 {v(tb+2)}, {v(tb)}, {v(rc)}"); a(f"v_fmac_f32 {v(tb+3)}, {v(tb+1)}, {v(rc)}")
    for i in range(4): unpack(a, X[2*i], X[2*i+1], TA[i])
    a(f"v_cvt_pk_bf16_f32 {v(tb)}, {v(tb+2)}, {v(tb+3)}")
    unpack(a, HP, HP+1, tb)
    stats()
    ln_pair(a, HP, HP+1, mb, sq, rc, PK, t0, t1, t2, t3)
    a(f"v_mov_b32 {v(t0)}, 0")
    a(f"ds_write_b32 {v(t0)}, {v(PK)} offset:{LDS_FL}")
    a("s_waitcnt lgkmcnt(0)")
    a.label(f"{name}_lnw")
    if fine: nst[0] -= 1; stamp()
    a(f"v_mov_b32 {v(t0)}, 0")
    a("s_barrier")
    a(f"ds_read_b32 {v(PK)}, {v(t0)} offset:{LDS_FL}")
    a("s_waitcnt lgkmcnt(0)")
    unpack(a, HP, HP+1, PK)
    if fine: stamp()
    u = [VA+12+i for i in range(8)]; w = [VA+20+i for i in range(8)]; z = [VA+28, VA+29]; tc = [KA+i for i in range(4)]
    units = [(k, ch) for k in range(2) for ch in range(2)]
    def each(fn):
        for i, (k, ch) in enumerate(units): fn(u[2*i], w[2*i], tc[i], k, ch)
    def rn(U, W_, t, k, ch):
        a(f"v_cvt_pk_bf16_f32 {v(t)}, {v(U)}, {v(U+1)}")
    each(lambda U, W_, t, k, ch: a(f"v_pk_mul_f32 {v(U,2)}, {v(W1u[k],2)}, {v(HP,2)} op_sel:[0,{ch}] op_sel_hi:[1,{ch}]"))
    each(rn); each(lambda U, W_, t, k, ch: unpack(a, U, U+1, t))
    each(lambda U, W_, t, k, ch: a(f"v_pk_add_f32 {v(U,2)}, {v(U,2)}, {v(B1u[k],2)}"))
    each(rn); each(lambda U, W_, t, k, ch: unpack(a, U, U+1, t))
    each(lambda U, W_, t, k, ch: a(f"v_pk_mul_f32 {v(W_,2)}, {v(U,2)}, {v(U,2)}"))
    each(lambda U, W_, t, k, ch: a(f"v_pk_fma_f32 {v(W_,2)}, {v(W_,2)}, s[4:5], {v(CC0,2)}"))
    each(lambda U, W_, t, k, ch: a(f"v_pk_mul_f32 {v(W_,2)}, {v(W_,2)}, {v(U,2)}"))
    for i in range(8): a(f"v_exp_f32 {v(w[i])}, {v(w[i])}")
    each(lambda U, W_, t, k, ch: a(f"v_pk_add_f32 {v(W_,2)}, {v(W_,2)}, {v(ONE,2)}"))
    for i in range(8): a(f"v_rcp_f32 {v(w[i])}, {v(w[i])}")
    each(lambda U, W_, t, k, ch: a(f"v_pk_mul_f32 {v(U,2)}, {v(U,2)}, {v(W_,2)}"))
    each(rn)
    each(lambda U, W_, t, k, ch: a(f"v_dot2_f32_bf16 {v(z[ch])}, {v(t)}, {v(W2+k)}, {'0' if k == 0 else v(z[ch])}"))
    a(f"v_permlane32_swap_b32 {v(z[0])}, {v(z[1])}"); a(f"v_add_f32 {v(z[0])}, {v(z[0])}, {v(z[1])}")
    allreduce(a, "v_add_f32", z[0], t0, lanes=32)
    if fine: stamp()
    a("s_lshl_b32 s29, s3, 2"); a(f"v_add_u32 {v(t0)}, s29, v0")
    a("s_mov_b32 s6, 1"); a("s_mov_b32 s7, 1")
    a(f"v_and_b32 {v(t1)}, 32, v0")
    a("s_mov_b64 exec, s[6:7]")
    a(f"ds_write_b32 {v(t0)}, {v(z[0])} offset:{LDS_FR}")
    a("s_mov_b64 exec, -1")
    a(f"v_cmp_ne_u32 vcc, 0, {v(t1)}")
    a(f"v_cndmask_b32 {v(HH)}, {v(HH)}, {v(HH+1)}, vcc")
    a(f"v_lshrrev_b32 {v(t2)}, 4, {v(t1)}"); a("s_lshl_b32 s29, s2, 2"); a(f"v_add_u32 {v(t2)}, s29, {v(t2)}")
    a("s_waitcnt lgkmcnt(0)"); a("s_barrier")
    a("s_cmp_lg_u32 s3, 0"); a(f"s_cbranch_scc1 {name}_fin")
    a(f"ds_read_b128 {v(u[0],4)}, {v(t1)} offset:{LDS_FR}"); a(f"ds_read_b128 {v(u[4],4)}, {v(t1)} offset:{LDS_FR+16}")
    a(f"v_mov_b32 {v(t0)}, 0"); a(f"v_mov_b32 {v(t1)}, s61")
    a("s_waitcnt lgkmcnt(0)")
    for i in range(4): a(f"v_add_f32 {v(u[i])}, {v(u[i])}, {v(u[4+i])}")
    a(f"v_add_f32 {v(u[0])}, {v(u[0])}, {v(u[1])}"); a(f"v_add_f32 {v(u[2])}, {v(u[2])}, {v(u[3])}"); a(f"v_add_f32 {v(z[0])}, {v(u[0])}, {v(u[2])}")
    rne1(a, z[0], z[0], t3)
    a(f"v_add_f32 {v(z[0])}, s60, {v(z[0])}")
    rne1(a, z[0], z[0], t3)
    a(f"v_add_f32 {v(z[0])}, {v(z[0])}, {v(HH)}")
    a(f"v_cvt_pk_bf16_f32 {v(z[0])}, {v(z[0])}, {v(z[0])}")
    a("s_mov_b64 exec, s[6:7]")
    a(f"global_store_short {v(t2)}, {v(z[0])}, s[50:51]")
    a("s_cmp_lg_u32 s2, 0"); a(f"s_cbranch_scc1 {name}_fin")
    a("s_mov_b64 exec, 1")
    a(f"global_store_dword {v(t0)}, {v(t1)}, s[46:47] offset:{WS_EP}")
    a.label(f"{name}_fin")
    if fine: stamp()
    if stamps:
        a("s_mov_b64 exec, 1")
        a("s_waitcnt vmcnt(0)")
        stamp()
        a.label(f"{name}_fin2")
        a("s_mov_b64 exec, 1")
        a("s_waitcnt lgkmcnt(0)")
        assert nst[0] <= 16
        a("s_lshl_b32 s29, s2, 3"); a("s_add_u32 s29, s29, s3"); a("s_lshl_b32 s29, s29, 7"); a(f"s_add_u32 s29, s29, {WS_STAMP}")
        a(f"v_mov_b32 {v(tm)}, s29")
        n = (nst[0] + 1) // 2
        if dbgst:
            a("s_load_dwordx2 s[44:45], s[0:1], 88")
            a("s_not_b32 s29, s64")
            a(f"v_mov_b32 {v(T)}, s29")
            for i in range(nst[0]): a(f"v_writelane_b32 {v(T)}, s{64+2*i}, {i+1}")
            a(f"s_mov_b64 exec, {hex((1 << (nst[0]+1)) - 1)}")
            a(f"v_lshlrev_b32 {v(T+1)}, 2, v0")
            a("s_waitcnt lgkmcnt(0)")
            a(f"global_atomic_umax {v(T+1)}, {v(T)}, s[44:45]")
            a("s_endpgm")
        for i in range(4*n): a(f"v_mov_b32 {v(T+i)}, s{64+i}")
        for i in range(n): a(f"global_store_dwordx4 {v(tm)}, {v(T+4*i,4)}, s[46:47] offset:{16*i}")
    a.label(f"{name}_end"); a("s_endpgm")
    a.label(f"{name}_w0")
    nst_end = nst[0]; nst[0] = nst_save
    if bare:
        a("s_mov_b32 s22, 0"); kv_setup(); loadK(KA); loadV(VA); a("s_barrier"); late_setup(); a("s_waitcnt vmcnt(0)"); stamp(); stamp(); nst[0] -= 2
        a("s_barrier"); init_state(); a(f"s_branch {name}_join")
    if prio: a("s_setprio 3")
    W = KB; X = [M+i for i in range(8)]; xr = M + 8; vo = M + 12; mb, sq, rc = M+13, M+14, M+15
    t0, t1, t2, t3 = T, T+1, T+2, T+3
    CL = O
    a(f"v_lshrrev_b32 {v(t0)}, 2, v0"); a(f"v_and_b32 {v(t1)}, 3, v0"); a(f"v_lshlrev_b32 {v(t2)}, 6, {v(t0)}"); a(f"v_lshl_add_u32 {v(t2)}, {v(t1)}, 3, {v(t2)}")
    a(f"v_lshlrev_b32 {v(vo)}, 13, {v(t0)}"); a(f"v_lshl_add_u32 {v(vo)}, {v(t1)}, 4, {v(vo)}")
    a("s_and_b32 s31, s21, 1"); a("s_lshr_b32 s34, s21, 1")
    a("s_lshl_b32 s32, s20, 10"); a(f"s_xor_b32 s33, s34, {qx}"); a("s_lshl_b32 s33, s33, 6"); a("s_add_u32 s32, s32, s33"); a("s_lshl_b32 s33, s31, 21"); a("s_add_u32 s32, s32, s33")
    a("s_mov_b32 s18, 0x400000"); a("s_mov_b32 s19, 0x20000")
    a("s_waitcnt lgkmcnt(0)")
    a(f"global_load_dwordx2 {v(xr,2)}, {v(t2)}, s[36:37]"); a(f"global_load_dwordx2 {v(xr+2,2)}, {v(t2)}, s[36:37] offset:32")
    a("s_mov_b32 s16, s42"); a("s_mov_b32 s17, s43")
    for i in range(16):
        if noq == 2: a(f"buffer_load_dwordx4 {v(W+4*i,4)}, {v(vo)}, s[16:19], s19 offen offset:4000") if False else a(f"global_load_dword {v(W+4*i)}, {v(t2)}, s[36:37]")
        else: a(f"buffer_load_dwordx4 {v(W+4*i,4)}, {v(vo)}, s[16:19], s32 offen {qpol}")
        if i < 15: a("s_add_u32 s32, s32, 0x20000")
    for i in range(4): a(f"v_mov_b32 {v(CL+i)}, -1")
    a("s_lshl_b32 s29, s20, 16"); a("s_lshl_b32 s30, s21, 10"); a("s_add_u32 s29, s29, s30"); a(f"s_add_u32 s29, s29, {WS_OP}")
    a(f"v_lshl_add_u32 {v(CL+4)}, v0, 4, s29"); a(f"v_add_u32 {v(CL+5)}, 0x8000, {v(CL+4)}")
    a("s_lshl_b32 s29, s20, 10"); a("s_lshl_b32 s30, s21, 3"); a("s_add_u32 s29, s29, s30"); a(f"s_add_u32 s29, s29, {WS_ML}")
    a(f"v_lshl_add_u32 {v(CL+6)}, v0, 8, s29")
    a("s_lshl_b32 s29, s20, 12"); a("s_lshl_b32 s30, s31, 11"); a("s_add_u32 s29, s29, s30"); a("s_lshl_b32 s30, s34, 7"); a("s_add_u32 s29, s29, s30")
    a(f"s_add_u32 s29, s29, {WS_YP}")
    if rep8:
        a(f"v_lshrrev_b32 {v(CL+7)}, 3, v0"); a(f"v_lshlrev_b32 {v(CL+7)}, 15, {v(CL+7)}"); a(f"v_and_b32 {v(CL+8)}, 7, v0"); a(f"v_lshlrev_b32 {v(CL+8)}, 4, {v(CL+8)}")
        a(f"v_add3_u32 {v(CL+7)}, {v(CL+7)}, {v(CL+8)}, s29")
    else: a(f"v_lshl_add_u32 {v(CL+7)}, v0, 4, s29")
    a(f"global_load_dword {v(CL+20)}, {v(t2)}, s[36:37]" if noclr else f"global_store_dwordx4 {v(CL+4)}, {v(CL,4)}, s[46:47] sc1")
    a(f"global_load_dword {v(CL+20)}, {v(t2)}, s[36:37]" if noclr else f"global_store_dwordx4 {v(CL+5)}, {v(CL,4)}, s[46:47] sc1")
    a("s_mov_b64 exec, 0xf")
    a(f"global_load_dword {v(CL+20)}, {v(t2)}, s[36:37]" if noclr else f"global_store_dwordx2 {v(CL+6)}, {v(CL,2)}, s[46:47] sc1")
    a("s_mov_b64 exec, -1" if rep8 else "s_mov_b64 exec, 0xff")
    a(f"global_load_dword {v(CL+20)}, {v(t2)}, s[36:37]" if noclr else f"global_store_dwordx4 {v(CL+7)}, {v(CL,4)}, s[46:47] sc1")
    a("s_mov_b64 exec, -1")
    a("s_mov_b32 s22, 0")
    kv_setup()
    loadK(KA); loadV(VA)
    a("s_barrier")
    late_setup()
    a(f"v_lshrrev_b32 {v(t2)}, 3, {v(t0)}"); a(f"v_lshlrev_b32 {v(vo)}, 9, {v(t2)}"); a(f"v_lshl_add_u32 {v(vo)}, {v(t1)}, 7, {v(vo)}")
    a(f"v_and_b32 {v(t2)}, 7, {v(t0)}"); a(f"v_lshl_add_u32 {v(vo)}, {v(t2)}, 2, {v(vo)}")
    RA = CL + 8
    a("s_lshl_b32 s29, s31, 9"); a(f"v_lshl_add_u32 {v(RA)}, {v(t0)}, 5, s29")
    GS = CL + 9
    a(f"v_lshrrev_b32 {v(t2)}, 4, v0"); a(f"v_lshlrev_b32 {v(GS)}, 6, {v(t1)}"); a(f"v_lshl_add_u32 {v(GS)}, {v(t2)}, 4, {v(GS)}")
    a("s_lshl_b32 s29, s20, 13"); a(f"s_add_u32 s29, s29, {WS_QG}"); a("s_lshl_b32 s30, s31, 12"); a("s_add_u32 s30, s30, s29"); a("s_lshl_b32 s33, s34, 8"); a("s_add_u32 s30, s30, s33")
    a(f"v_add_u32 {v(GS)}, s30, {v(GS)}")
    GL = CL + 10
    a(f"v_lshl_add_u32 {v(GL)}, v0, 4, s29"); a(f"v_add_u32 {v(GL+1)}, 0x1000, {v(GL)}")
    a("s_lshl_b32 s30, s20, 8"); a(f"v_and_b32 {v(t2)}, 31, v0"); a(f"v_lshl_add_u32 {v(GL+2)}, {v(t2)}, 3, s30")
    a("s_lshl_b32 s33, s21, 3"); a("s_add_u32 s33, s33, s30"); a(f"v_mov_b32 {v(GL+3)}, s33")
    a("s_waitcnt vmcnt(36)")
    for i in range(4): unpack(a, X[2*i], X[2*i+1], xr + i)
    ln_stats(a, X, mb, sq, rc, t0, t1, t2)
    for e in range(4):
        ln_pair(a, X[e], X[e+4], mb, sq, rc, xr + e, t0, t1, t2, t3)
        a(f"ds_write_b32 {v(vo)}, {v(xr+e)} offset:{LDS_XN + 32*e}")
    a("s_waitcnt lgkmcnt(0)")
    a(f"ds_read_b128 {v(X[0],4)}, {v(RA)} offset:{LDS_XN}"); a(f"ds_read_b128 {v(X[4],4)}, {v(RA)} offset:{LDS_XN+16}")
    AC = CL + 16
    for c in range(8): a(f"v_mov_b32 {v(AC+c)}, 0")
    a("s_add_u32 s62, s61, 0x9e3779b9")
    GD = CL + 24
    a(f"v_mov_b32 {v(GD+1)}, s62"); a(f"v_mov_b32 {v(GD+3)}, s62"); a(f"v_mov_b32 {v(GD+4)}, s63"); a(f"v_mov_b32 {v(GD+5)}, s62")
    a("s_waitcnt lgkmcnt(0)")
    for p in range(8):
        a(f"s_waitcnt vmcnt({20 + 14 - 2*p})")
        for cc in range(4):
            a(f"v_perm_b32 {v(T+2*cc)}, {v(W+8*p+4+cc)}, {v(W+8*p+cc)}, s25")
            a(f"v_perm_b32 {v(T+2*cc+1)}, {v(W+8*p+4+cc)}, {v(W+8*p+cc)}, s26")
        for c in range(8): a(f"v_dot2_f32_bf16 {v(AC+c)}, {v(T+c)}, {v(X[p])}, {v(AC+c)}")
    a.nop(3)
    fold8(AC)
    a(f"v_mov_b32 {v(GD)}, {v(AC)}"); a(f"v_mov_b32 {v(GD+2)}, {v(AC+1)}")
    a("s_mov_b32 s4, 0x000f000f"); a("s_mov_b32 s5, 0x000f000f")
    a("s_waitcnt vmcnt(16)")
    a("s_mov_b64 exec, s[4:5]")
    a(f"global_store_dwordx4 {v(GS)}, {v(GD,4)}, s[46:47] sc1")
    a("s_mov_b64 exec, 1")
    a(f"global_store_dwordx2 {v(GL+3)}, {v(GD+4,2)}, s[46:47] offset:{WS_XG} sc1")
    a("s_mov_b64 exec, -1")
    stamp()
    a("s_mov_b32 s30, 0"); a("s_mov_b32 s31, 0")
    GA = KB
    if xgfirst:
        a.label(f"{name}_pollx")
        a(f"global_load_dwordx2 {v(GA+32,2)}, {v(GL+2)}, s[46:47] offset:{WS_XG} sc1")
        a("s_add_u32 s30, s30, 1")
        a("s_waitcnt vmcnt(0)")
        a(f"v_cmp_ne_u32 vcc, s62, {v(GA+33)}")
        a(f"s_cbranch_vccz {name}_poll")
        a(f"s_cmp_gt_u32 s30, {SPIN_MAX}"); a(f"s_cbranch_scc1 {name}_polled")
        if qsleep: a(f"s_sleep {qsleep}")
        a(f"s_branch {name}_pollx")
        a.label(f"{name}_poll")
        for i in range(8):
            a(f"global_load_dwordx4 {v(GA+4*i,4)}, {v(GL + (i >> 2))}, s[46:47] offset:{1024*(i&3)} sc1")
        a("s_add_u32 s30, s30, 1")
        a("s_waitcnt vmcnt(0)")
        for i in range(16): a(f"v_xor_b32 {v(GA+2*i+1)}, s62, {v(GA+2*i+1)}")
        for i in range(0, 16, 4):
            a(f"v_or3_b32 {v(GA+2*i+1)}, {v(GA+2*i+1)}, {v(GA+2*i+3)}, {v(GA+2*i+5)}"); a(f"v_or_b32 {v(GA+2*i+1)}, {v(GA+2*i+1)}, {v(GA+2*i+7)}")
        a(f"v_or3_b32 {v(GA+1)}, {v(GA+1)}, {v(GA+9)}, {v(GA+17)}"); a(f"v_or_b32 {v(GA+1)}, {v(GA+1)}, {v(GA+25)}")
        a(f"v_cmp_ne_u32 vcc, 0, {v(GA+1)}")
        a(f"s_cmp_gt_u32 s30, {SPIN_MAX}"); a(f"s_cbranch_scc1 {name}_polled")
        a(f"s_cbranch_vccnz {name}_poll")
    else:
        if noq: a(f"s_branch {name}_polled")
        a.label(f"{name}_poll")
        if qdelay: a(f"s_sleep {qdelay}")
        for i in range(8):
            a(f"s_bitcmp1_b32 s31, {i}"); a(f"s_cbranch_scc1 {name}_qk{i}")
            a(f"global_load_dwordx4 {v(GA+4*i,4)}, {v(GL + (i >> 2))}, s[46:47] offset:{1024*(i&3)} sc1")
            a.label(f"{name}_qk{i}")
        if not xglast: a(f"global_load_dwordx2 {v(GA+32,2)}, {v(GL+2)}, s[46:47] offset:{WS_XG} sc1")
        a("s_add_u32 s30, s30, 1")
        a("s_waitcnt vmcnt(0)")
        for i in range(8):
            a(f"v_cmp_ne_u32 vcc, s62, {v(GA+4*i+1)}"); a(f"v_cmp_ne_u32 s[4:5], s62, {v(GA+4*i+3)}")
            a("s_or_b64 vcc, vcc, s[4:5]"); a(f"s_cselect_b32 s34, 0, {1<<i}"); a("s_or_b32 s31, s31, s34")
        if xglast:
            a(f"s_cmp_gt_u32 s30, {SPIN_MAX}"); a(f"s_cbranch_scc1 {name}_polled")
            a("s_cmp_eq_u32 s31, 0xff"); a(f"s_cbranch_scc0 {name}_poll")
            a.label(f"{name}_pollx")
            a(f"global_load_dwordx2 {v(GA+32,2)}, {v(GL+2)}, s[46:47] offset:{WS_XG} sc1")
            a("s_add_u32 s30, s30, 1")
            a("s_waitcnt vmcnt(0)")
            a(f"v_cmp_ne_u32 vcc, s62, {v(GA+33)}")
            a(f"s_cmp_gt_u32 s30, {SPIN_MAX}"); a(f"s_cbranch_scc1 {name}_polled")
            a(f"s_cbranch_vccnz {name}_pollx")
        else:
            a(f"v_cmp_ne_u32 vcc, s62, {v(GA+33)}")
            a(f"s_cmp_gt_u32 s30, {SPIN_MAX}"); a(f"s_cbranch_scc1 {name}_polled")
            a(f"s_cbranch_vccnz {name}_poll")
            a("s_cmp_eq_u32 s31, 0xff"); a(f"s_cbranch_scc0 {name}_poll")
    a.label(f"{name}_polled")
    stamp()
    for i in range(4):
        a(f"v_add_f32 {v(GA+4*i)}, {v(GA+4*i)}, {v(GA+16+4*i)}"); a(f"v_add_f32 {v(GA+4*i+2)}, {v(GA+4*i+2)}, {v(GA+16+4*i+2)}")
        a(f"v_cvt_pk_bf16_f32 {v(T+4+i)}, {v(GA+4*i)}, {v(GA+4*i+2)}")
    a(f"v_lshlrev_b32 {v(t0)}, 2, v0")
    a(f"ds_write2st64_b32 {v(t0)}, {v(T+4)}, {v(T+5)} offset0:{LDS_Q//256} offset1:{LDS_Q//256+1}")
    a(f"ds_write2st64_b32 {v(t0)}, {v(T+6)}, {v(T+7)} offset0:{LDS_Q//256+2} offset1:{LDS_Q//256+3}")
    a(f"v_cmp_ne_u32 vcc, s63, {v(GA+32)}")
    a("s_cmp_eq_u64 vcc, 0"); a("s_cselect_b32 s29, 1, 0")
    a(f"v_mov_b32 {v(t0)}, 0"); a(f"v_mov_b32 {v(t1)}, s29")
    a(f"ds_write_b32 {v(t0)}, {v(t1)} offset:{LDS_FL}")
    a("s_waitcnt lgkmcnt(0)")
    a("s_barrier")
    tail_loads()
    if prio: a("s_setprio 0")
    init_state()
    a(f"s_branch {name}_join")
    a.label(f"{name}_w0wait")
    if loopbar:
        for i in range(8): a("s_barrier")
    a(f"s_branch {name}_last")
    a.label(f"{name}_tg0")
    if codewarm:
        a("s_getpc_b64 s[96:97]")
        a.label(f"{name}_pc0")
        a(f"s_sub_u32 s96, s96, {name}_pc0-{name}_tgd"); a("s_subb_u32 s97, s97, 0")
        for i in range(codewarm):
            a(f"s_load_dword s98, s[96:97], {64*i}")
            if i % 8 == 7: a("s_waitcnt lgkmcnt(0)")
        a("s_waitcnt lgkmcnt(0)")
    a(f"v_lshlrev_b32 {v(t0)}, 4, v0"); a("s_mov_b32 s30, 0")
    a.label(f"{name}_tg")
    a(f"global_load_dwordx4 {v(GA,4)}, {v(t0)}, s[46:47] offset:{WS_XG} sc1")
    a(f"global_load_dwordx4 {v(GA+4,4)}, {v(t0)}, s[46:47] offset:{WS_XG+1024} sc1")
    a("s_add_u32 s30, s30, 1")
    a("s_waitcnt vmcnt(0)")
    for i in (1, 3, 5, 7): a(f"v_xor_b32 {v(GA+i)}, s61, {v(GA+i)}")
    a(f"v_or3_b32 {v(GA+1)}, {v(GA+1)}, {v(GA+3)}, {v(GA+5)}"); a(f"v_or_b32 {v(GA+1)}, {v(GA+1)}, {v(GA+7)}")
    a(f"v_cmp_ne_u32 vcc, 0, {v(GA+1)}")
    a(f"s_cmp_gt_u32 s30, {SPIN_MAX}"); a(f"s_cbranch_scc1 {name}_tgd")
    a(f"s_cbranch_vccnz {name}_tg")
    a(f"s_branch {name}_tgd")
    nst[0] = nst_end
    return LDS_END

def build(fn, **kw):
    a = Asm(); name = KN + "_kernel"
    lds = gen_fused(a, name, **kw)
    out = f"; @launch grid=(256,1,1) block=(512,1,1) lds={lds}\n" + '.amdgcn_target "amdgcn-amd-amdhsa--gfx950"\n.text\n' + a.text()
    out += '.section .rodata,"a"\n' + kd(name, a.maxv + 1, max(a.maxs + 1, 16))
    open(fn, "w").write(out)

if __name__ == "__main__":
    RP = [3,3,2,2,1,1,0,0,0]
    build("v13.s", rprio=RP)
    build("r_a.s", rprio=RP, stamps=True)
    build("r_b.s", rprio=RP, stamps=True, ps2=16)
    build("r_c.s", rprio=RP, stamps=True, ps2=16, ps3=16)
    build("r_d.s", rprio=RP, stamps=True, ps3=16)
    build("r_e.s", rprio=RP, stamps=True, stop=True)
    build("r_f.s", rprio=RP, stamps=True, ps2=4, ps3=4)
```
